```python
import torch

def _softmax(x, axis=-1):
    return torch.softmax(x, dim=axis)
def _gelu(x):
    return torch.nn.functional.gelu(x, approximate="tanh")
def _silu(x):
    return torch.nn.functional.silu(x)
def _sigmoid(x):
    return torch.sigmoid(x)
def _layernorm(x, axis=-1, eps=1e-5):
    m = x.mean(dim=axis, keepdim=True)
    v = x.var(dim=axis, keepdim=True, unbiased=False)
    return (x - m) / torch.sqrt(v + eps)
def _scatter_add(tgt, idx, src, axis=0):
    return tgt.clone().index_add_(axis, idx, src)
def _segment_sum(src, seg, n):
    out = torch.zeros((n,) + src.shape[1:], dtype=src.dtype)
    return out.index_add_(0, seg, src)
def _pad(x, pw):
    flat = tuple(v for pair in reversed(pw) for v in pair)
    return torch.nn.functional.pad(x, flat)

kernel_name = 'parallel_sum__mha_block_cached__dense_activation_silu__decode'

def setup_inputs():

    _w = (lambda a: (lambda t: t.to(torch.bfloat16) if t.is_floating_point() else t)(torch.as_tensor(a)))
    def _A_setup():
        B, Sq, D = 8, 1, 512
        H, Sk, Dh = 32, 4096, 128
        return {
            "x": _w((lambda *s: torch.randn(*s, dtype=torch.bfloat16) * 0.05)(B, Sq, D)),
            "k_cache": _w((lambda *s: torch.randn(*s, dtype=torch.bfloat16) * 3.2)(B, H, Sk, Dh)),
            "v_cache": _w((lambda *s: torch.randn(*s, dtype=torch.bfloat16) * 0.8)(B, H, Sk, Dh)),
            "wq": _w((lambda *s: torch.randn(*s, dtype=torch.bfloat16) * 3.2)(D, H * Dh) * (D ** -0.5)),
            "wo": _w((lambda *s: torch.randn(*s, dtype=torch.bfloat16) * 0.8)(H * Dh, D) * ((H * Dh) ** -0.5)),
        }
    _A_in = _A_setup()

    def _B_setup():
        B, S, D, F = 8, 1, 512, 1792
        return {
            "x": _w((lambda *s: torch.randn(*s, dtype=torch.bfloat16) * 0.05)(B, S, D)),
            "w1": _w((lambda *s: torch.randn(*s, dtype=torch.bfloat16) * 3.2)(D, F) * (D ** -0.5)),
            "w2": _w((lambda *s: torch.randn(*s, dtype=torch.bfloat16) * 0.4)(F, D) * (F ** -0.5)),
        }
    _B_in = _B_setup()

    return {
        "A_x": _A_in["x"],
        "A_k_cache": _A_in["k_cache"],
        "A_v_cache": _A_in["v_cache"],
        "A_wq": _A_in["wq"],
        "A_wo": _A_in["wo"],
        "B_x": _B_in["x"],
        "B_w1": _B_in["w1"],
        "B_w2": _B_in["w2"],
    }

def reference(A_x, A_k_cache, A_v_cache, A_wq, A_wo, B_x, B_w1, B_w2):
    def _A_ref(x, k_cache, v_cache, wq, wo):
        B, Sq, D = x.shape
        H, Dh = 32, 128
        q = (lambda x, *d: x.permute(*d))((x @ wq).reshape(B, Sq, H, Dh), 0, 2, 1, 3)
        scores = torch.einsum("bhqd,bhkd->bhqk", q, k_cache) * (Dh ** -0.5)
        p = _softmax(scores, axis=-1)
        o = torch.einsum("bhqk,bhkd->bhqd", p, v_cache)
        return (lambda x, *d: x.permute(*d))(o, 0, 2, 1, 3).reshape(B, Sq, H * Dh) @ wo

    def _B_ref(x, w1, w2):
        h = torch.einsum("bsd,df->bsf", x, w1)
        h = _silu(h)
        out = torch.einsum("bsf,fd->bsd", h, w2)
        return out

    x = A_x
    xn = _layernorm(x, axis=-1)
    return x + _A_ref(xn, A_k_cache, A_v_cache, A_wq, A_wo) + _B_ref(xn, B_w1, B_w2)
```

```python
import sys

NAME = "parallel_sum__mha_block_cached__dense_activation_silu__decode"

DEFAULT = dict(
    LEVELS=(17, 19, 28),
    HEAD=0,
    BASE=1,
    TAIL=2,
    TAILC=8,
    CHECK=440,
    BPUB=504,
    NSLOT=9,
    spol="nt",
    wpol="",
    wqpol=None,
    NQ=5,
    NW=2,
    rot=True,
    dry=True,
    stamps=False,
    prefetch=True,
    name=NAME + "_kernel",
)

WS_B = 0x80000
LOG2E = 0x3FB8AA3B
SCALE = 0x3DB504F3
DPPALL = "row_mask:0xf bank_mask:0xf"
NWAVES = 7


class Gen:
    def __init__(self, **kw):
        self.c = dict(DEFAULT)
        self.c.update(kw)
        if self.c["wqpol"] is None:
            self.c["wqpol"] = self.c["wpol"]
        self.L = []
        self.uid = 0
        self.p = "L"
        self.RINGEND = self.c["NSLOT"] * 0x4000
        self.SBUF = self.RINGEND
        m = self.SBUF + 0x2100
        self.LANDED = m
        self.CONSUMED = m + 0x100
        self.LEVEL = m + 0x200
        self.CNT = m + 0x300
        self.QBUF = m + 0x400
        self.QPK = m + 0xC00
        self.OBUF = m + 0xD00
        self.FBUF = m + 0xE00
        self.LDS_BYTES = m + 0x1600
        assert self.LDS_BYTES <= 160 * 1024

    def a(self, s):
        for line in s.strip("\n").split("\n"):
            line = line.strip()
            if not line:
                continue
            if line.endswith(":"):
                self.L.append(line)
            else:
                self.L.append("    " + line)

    def lab(self, n):
        return f"{self.p}_{n}"

    def new(self, n):
        self.uid += 1
        return f"{self.p}_{n}{self.uid}"

    def stamp(self, k):
        if self.c["stamps"]:
            self.a(f"s_memrealtime s[{64+2*k}:{65+2*k}]\ns_waitcnt lgkmcnt(0)")

    def stamp_flush(self, n):
        if not self.c["stamps"]:
            return
        self.a("s_load_dwordx2 s[98:99], s[0:1], 80")
        self.a("s_lshl_b32 s96, s2, 10\ns_lshl_b32 s97, s3, 7\ns_add_u32 s96, s96, s97\ns_add_u32 s96, s96, 0x1000000")
        self.a("s_mov_b64 exec, -1\nv_mov_b32 v1, s96\ns_sleep 127\ns_sleep 127\ns_sleep 127\ns_waitcnt lgkmcnt(0)")
        for k in range(n):
            self.a(f"v_mov_b32 v2, s{64+2*k}\nv_mov_b32 v3, s{65+2*k}")
            self.a(f"global_store_dwordx2 v1, v[2:3], s[98:99] offset:{8*k}")
            self.a("s_waitcnt vmcnt(0)")

    def budget(self):
        self.a(f"s_sub_u32 s7, s7, 1\ns_cbranch_scc1 {self.lab('end')}")

    def bf16r(self, d, s):
        self.a(f"v_cvt_pk_bf16_f32 {d}, {s}, {s}\nv_and_b32 {d}, 0xffff0000, {d}")

    def wave_red(self, op, v):
        for sh in (8, 4, 2, 1):
            self.a(f"s_nop 1\n{op}_dpp {v}, {v}, {v} row_ror:{sh} {DPPALL}")
        self.a(f"s_nop 1\n{op}_dpp {v}, {v}, {v} row_bcast:15 row_mask:0xa bank_mask:0xf")
        self.a(f"s_nop 1\n{op}_dpp {v}, {v}, {v} row_bcast:31 row_mask:0xc bank_mask:0xf")

    def srd(self, r, p, size):
        self.a(f"s_mov_b32 s{r}, s{p}\ns_and_b32 s{r+1}, s{p+1}, 0xffff\ns_mov_b32 s{r+2}, {size:#x}\ns_mov_b32 s{r+3}, 0x20000")

    def masks(self):
        self.a("""
        v_and_b32 v1, 1, v0
        v_lshlrev_b32 v1, 4, v1
        v_mov_b32 v2, 0xffff
        v_lshlrev_b32 v1, v1, v2
        v_bfe_u32 v2, v0, 1, 2
        """)
        for d in range(4):
            self.a(f"v_cmp_eq_u32 vcc, {d}, v2\ns_nop 1\nv_cndmask_b32 v{12+d}, 0, v1, vcc")

    def build_a(self, dst, p, n):
        for d in range(4):
            self.a(f"v_and_b32_dpp v{dst+d}, {p}, v{12+d} row_newbcast:{n} {DPPALL}")

    def lds_wait(self, sreg, need, vaddr, vt, cached=True, sleep=0):
        go, poll = self.new("go"), self.new("poll")
        if cached:
            self.a(f"s_cmp_ge_i32 {sreg}, {need}\ns_cbranch_scc1 {go}")
        self.a(f"{poll}:")
        self.budget()
        if sleep:
            self.a(f"s_sleep {sleep}")
        self.a(f"""
        ds_read_b32 {vt}, {vaddr}
        s_waitcnt lgkmcnt(0)
        v_readfirstlane_b32 {sreg}, {vt}
        s_cmp_ge_i32 {sreg}, {need}
        s_cbranch_scc0 {poll}
        {go}:
        """)

    def xrot(self, d, sh_lo, sh_hi):
        if not self.c["rot"]:
            self.a(f"s_mov_b32 {d}, 0")
            return
        self.a(f"""
        s_bfe_u32 {d}, s2, 0x20005
        s_lshl_b32 {d}, {d}, {sh_lo}
        s_lshr_b32 s35, s2, 7
        s_lshl_b32 s35, s35, {sh_hi}
        s_or_b32 {d}, {d}, s35
        """)

    def next_slot(self, s):
        self.a(f"s_add_u32 {s}, {s}, 0x4000\ns_cmp_eq_u32 {s}, {self.RINGEND:#x}\ns_cselect_b32 {s}, 0, {s}")

    def entry(self):
        c = self.c
        self.a(f"""
        s_load_dwordx4 s[12:15], s[0:1], 8
        s_cmp_ge_u32 s2, 256
        s_cbranch_scc1 {self.lab('end')}
        v_lshrrev_b32 v1, 6, v0
        v_and_b32 v0, 63, v0
        s_mov_b32 s7, 0x100000
        v_readfirstlane_b32 s3, v1
        """)
        if c["stamps"]:
            self.a("s_memrealtime s[64:65]")
        self.a(f"""
        s_cmp_lg_u32 s3, 0
        s_cbranch_scc1 {self.lab('roles')}
        """)

    def roles(self):
        self.a(f"""
        {self.lab('roles')}:
        s_cmp_eq_u32 s3, 1
        s_cbranch_scc1 {self.lab('consumer')}
        s_cmp_eq_u32 s3, 6
        s_cbranch_scc1 {self.lab('aux')}
        """)

    def loader(self):
        c = self.c
        LV = c["LEVELS"]
        self.a("s_setprio 3\nv_lshlrev_b32 v16, 4, v0")
        self.a(f"""
        v_lshlrev_b32 v2, 2, v0
        v_add_u32 v2, {self.LANDED}, v2
        v_mov_b32 v4, 0
        v_mov_b32 v5, {c['HEAD']}
        ds_write_b32 v2, v4
        ds_write_b32 v2, v4 offset:256
        ds_write_b32 v2, v5 offset:512
        ds_write_b32 v2, v4 offset:768
        """)
        for p in range(1, 16):
            self.a(f"v_xor_b32 v{16+p}, {p*16}, v16")
        self.a(f"""
        v_mov_b32 v3, {self.CONSUMED}
        s_lshl_b32 s6, s2, 20
        s_mov_b32 s18, 0x100000
        s_mov_b32 s19, 0x20000
        s_mov_b32 s24, 0
        s_mov_b32 s25, 0
        s_mov_b32 s26, 0
        s_mov_b32 s27, {1 - c['NSLOT']}
        s_mov_b32 s28, 0
        s_mov_b32 s29, 4
        s_waitcnt lgkmcnt(0)
        s_add_u32 s16, s12, s6
        s_addc_u32 s17, s13, 0
        s_and_b32 s17, s17, 0xffff
        """)
        self.stamp(1)

        def body(i):
            D = LV[i]
            self.a(f".p2align 3\n{self.lab(f'ld_d{i}')}:")
            for p in range(16):
                if p % 4 == 0:
                    self.a(f"s_add_u32 m0, s25, {(p//4)*4096}")
                self.a(f"s_waitcnt vmcnt({D-1})")
                self.a(f"buffer_load_dwordx4 v{16+p}, s[16:19], s24 offen offset:{(p%4)*1024} {c['spol']} lds")
                if (p - D + 1) % 4 == 0:
                    self.a(f"s_add_i32 s30, s28, {(p-D+1)//4}\nv_mov_b32 v4, s30\nds_write_b32 v2, v4")
                if p % 4 == 3:
                    self.a("s_add_u32 s24, s24, 4096")
                if p == 8:
                    self.a("ds_read2st64_b32 v[6:7], v3 offset0:0 offset1:1")
                if p == 12:
                    self.a("s_waitcnt lgkmcnt(0)\nv_readfirstlane_b32 s26, v6\nv_readfirstlane_b32 s31, v7")

        body(c["HEAD"])
        top = self.lab("ld_top")
        self.a(f"{top}:")
        self.next_slot("s25")
        self.a(f"""
        s_add_i32 s27, s27, 1
        s_add_i32 s28, s28, 4
        s_cmp_eq_u32 s28, s29
        s_cbranch_scc1 {self.lab('ld_event')}
        {self.lab('ld_go')}:
        """)
        self.lds_wait("s26", "s27", "v3", "v5")

        def dispatch(lo, hi):
            if lo == hi:
                self.a(f"s_branch {self.lab(f'ld_d{lo}')}")
                return
            mid = (lo + hi + 1) // 2
            if mid == hi:
                self.a(f"s_cmp_ge_i32 s31, {mid}\ns_cbranch_scc1 {self.lab(f'ld_d{hi}')}")
                dispatch(lo, mid - 1)
            else:
                up = self.new("ld_up")
                self.a(f"s_cmp_ge_i32 s31, {mid}\ns_cbranch_scc1 {up}")
                dispatch(lo, mid - 1)
                self.a(f"{up}:")
                dispatch(mid, hi)

        dispatch(0, len(LV) - 1)
        self.a(f"{self.lab('ld_event')}:")
        events = [(4, "s_barrier")]
        if c["stamps"]:
            events += [(16 << i, f"s_memrealtime s[{74+2*i}:{75+2*i}]\ns_waitcnt lgkmcnt(0)") for i in range(4)]
        sw = "v_lshrrev_b32 v17, 4, v0\nv_lshlrev_b32 v17, 5, v17\nv_xor_b32 v16, v16, v17\nv_xor_b32 v17, 0x80, v16\n"
        sw += "\n".join(f"v_mov_b32 v{16+p}, v{16+p%2}" for p in range(2, 16))
        sw += "\ns_add_u32 s16, s14, s6\ns_addc_u32 s17, s15, 0\ns_and_b32 s17, s17, 0xffff\ns_mov_b32 s24, 0"
        if c["stamps"]:
            sw += "\ns_memrealtime s[68:69]\ns_waitcnt lgkmcnt(0)"
        events.append((256, sw))
        if c["TAILC"]:
            events.append((512 - 4 * c["TAILC"], f"v_mov_b32 v5, {c['TAIL']}\nds_write_b32 v2, v5 offset:512\ns_mov_b32 s31, {c['TAIL']}"))
        for k, (at, code) in enumerate(events):
            nxt = events[k + 1][0] if k + 1 < len(events) else 512
            skip = self.new("ld_ev")
            self.a(f"s_cmp_lg_u32 s28, {at}\ns_cbranch_scc1 {skip}\n{code}\ns_mov_b32 s29, {nxt}\ns_branch {self.lab('ld_go')}\n{skip}:")
        self.stamp(3)
        for r in range((max(LV) - 1) // 4 * 4, -1, -4):
            self.a(f"v_mov_b32 v4, {(2048-r)//4}\ns_waitcnt vmcnt({r})\nds_write_b32 v2, v4")
        self.stamp(4)
        if c["stamps"]:
            self.a("s_barrier")
        self.stamp_flush(9)
        self.a("s_endpgm")
        for i in range(len(LV)):
            if i != c["HEAD"]:
                body(i)
                self.a(f"s_branch {top}")

    def consumer(self):
        c = self.c
        self.a(f"{self.lab('consumer')}:")
        self.a(f"""
        s_setprio 2
        v_lshlrev_b32 v122, 2, v0
        v_add_u32 v122, {self.CONSUMED}, v122
        """)
        self.a("v_and_b32 v1, 15, v0\nv_lshrrev_b32 v2, 4, v0\nv_xor_b32 v2, v2, v1\nv_lshlrev_b32 v2, 4, v2\nv_lshl_add_u32 v4, v1, 10, v2")
        for s in range(1, 4):
            self.a(f"v_xor_b32 v{4+s}, {s*64}, v4")
        self.a(f"""
        v_lshrrev_b32 v120, 4, v0
        v_bfe_u32 v1, v0, 2, 1
        v_lshl_add_u32 v120, v1, 2, v120
        v_and_b32 v1, 3, v0
        v_lshl_add_u32 v120, v1, 3, v120
        v_bfe_u32 v1, v0, 3, 1
        v_lshl_add_u32 v120, v1, 5, v120
        v_lshlrev_b32 v120, 1, v120
        v_add_u32 v120, {self.SBUF}, v120
        v_mov_b32 v121, {self.LANDED}
        v_mov_b32 v112, 0xff7fffff
        v_mov_b32 v113, 0
        v_mov_b32 v123, 0
        v_mov_b32 v125, {self.CNT}
        s_mov_b32 s26, 0
        s_mov_b32 s25, 0
        s_mov_b32 s27, 4
        s_mov_b32 s30, {LOG2E:#x}
        v_lshlrev_b32 v8, 3, v0
        v_add_u32 v8, {self.QBUF}, v8
        v_lshlrev_b32 v9, 2, v0
        v_add_u32 v9, {self.QPK}, v9
        v_and_b32 v10, 48, v0
        v_add_u32 v10, {self.QPK}, v10
        v_mov_b32 v11, {c['BASE']}
        s_barrier
        """)
        self.lds_wait("s29", "4", "v125", "v1", cached=False, sleep=1)
        for w in range(4):
            self.a(f"ds_read_b64 v[{32+2*w}:{33+2*w}], v8 offset:{w*512}")
        self.a(f"""
        ds_write_b32 v122, v11 offset:256
        s_waitcnt lgkmcnt(1)
        v_add_f32 v32, v32, v34
        v_add_f32 v33, v33, v35
        v_add_f32 v36, v36, v38
        v_add_f32 v37, v37, v39
        v_add_f32 v32, v32, v36
        v_add_f32 v33, v33, v37
        v_cvt_pk_bf16_f32 v32, v32, v33
        ds_write_b32 v9, v32
        """)
        for s in range(4):
            self.a(f"ds_read_b128 v[{16+4*s}:{19+4*s}], v10 offset:{s*64}")
        self.stamp(1)

        top = self.lab("k_loop")
        self.a(f".p2align 3\n{top}:")
        for s in range(4):
            self.a(f"v_add_u32 v{8+s}, s25, v{4+s}")
        self.lds_wait("s26", "s27", "v121", "v1")
        for jb in range(4):
            for s in range(4):
                r = 48 + (jb * 4 + s) * 4
                self.a(f"ds_read_b128 v[{r}:{r+3}], v{8+s} offset:{jb*256}")
        self.a("v_add_u32 v123, 1, v123")
        for jb in range(4):
            self.a(f"s_waitcnt lgkmcnt({12-4*jb})")
            if jb == 3:
                self.a("ds_write_b32 v122, v123")
            d = 32 + 4 * jb
            for s in range(4):
                r = 48 + (jb * 4 + s) * 4
                cc = "0" if s == 0 else f"v[{d}:{d+3}]"
                self.a(f"v_mfma_f32_16x16x32_bf16 v[{d}:{d+3}], v[{16+4*s}:{19+4*s}], v[{r}:{r+3}], {cc}")
        self.next_slot("s25")
        self.a("s_add_i32 s27, s27, 4\ns_nop 3")
        for jb in range(1, 4):
            self.a(f"v_mov_b32_dpp v32, v{32+4*jb} quad_perm:[0,1,2,3] row_mask:{1<<jb:#x} bank_mask:0xf")
        self.bf16r("v32", "v32")
        self.a(f"v_mul_f32 v32, {SCALE:#x}, v32")
        self.bf16r("v32", "v32")
        self.a(f"""
        ds_write_b16_d16_hi v120, v32
        v_max_f32 v114, v112, v32
        v_sub_f32 v115, v112, v114
        v_sub_f32 v116, v32, v114
        v_mul_f32 v115, s30, v115
        v_mul_f32 v116, s30, v116
        v_exp_f32 v115, v115
        v_exp_f32 v116, v116
        v_mov_b32 v112, v114
        v_add_u32 v120, 0x80, v120
        v_fma_f32 v113, v113, v115, v116
        s_cmp_le_i32 s27, 256
        s_cbranch_scc1 {top}
        """)
        self.stamp(2)
        self.a("v_subrev_u32 v120, 0x2000, v120\nds_read_u16 v117, v120\nv_mov_b32 v114, v112")
        self.wave_red("v_max_f32", "v114")
        self.a("""
        s_nop 0
        v_readlane_b32 s31, v114, 63
        s_nop 1
        v_subrev_f32 v115, s31, v112
        v_mul_f32 v115, s30, v115
        v_exp_f32 v115, v115
        s_nop 0
        v_mul_f32 v113, v113, v115
        """)
        self.wave_red("v_add_f32", "v113")
        self.xrot("s91", 6, 3)
        self.a(f"""
        v_rcp_f32 v113, v113
        s_nop 0
        v_readlane_b32 s32, v113, 63
        v_lshrrev_b32 v1, 2, v0
        v_lshlrev_b32 v119, 8, v1
        v_and_b32 v1, 7, v1
        v_lshl_add_u32 v119, v1, 5, v119
        v_and_b32 v1, 3, v0
        v_lshl_add_u32 v119, v1, 3, v119
        v_and_b32 v118, 48, v0
        v_add_u32 v118, {self.SBUF}, v118
        v_lshlrev_b32 v126, 2, v0
        v_xor_b32 v126, s91, v126
        v_add_u32 v126, {self.OBUF}, v126
        s_mov_b32 s27, 258
        s_waitcnt lgkmcnt(0)
        """)
        for i in range(32):
            self.a(f"v_mov_b32 v{16+i}, 0")

        def p_prep():
            self.a("""
            v_lshlrev_b32 v117, 16, v117
            v_subrev_f32 v117, s31, v117
            v_mul_f32 v117, s30, v117
            v_exp_f32 v117, v117
            s_nop 0
            v_mul_f32 v117, s32, v117
            v_cvt_pk_bf16_f32 v117, v117, v117
            ds_write_b16 v120, v117
            v_add_u32 v120, 0x80, v120
            """)

        AD = [112, 113, 114, 115, 116, 124, 125, 127]

        def addrs():
            self.a(f"v_add_u32 v{AD[0]}, s25, v119")
            for t in range(1, 8):
                self.a(f"v_xor_b32 v{AD[t]}, {t*32}, v{AD[0]}")

        def head(hf):
            self.a(f"ds_read_b128 v[{8+4*hf}:{11+4*hf}], v118 offset:{64*hf}")
            if hf == 0:
                self.a("ds_read_u16 v117, v120")

        def reads(hf, t):
            r = 48 + 32 * hf + 4 * t
            self.a(f"ds_read_b64_tr_b16 v[{r}:{r+1}], v{AD[t]} offset:{8192*hf}")
            self.a(f"ds_read_b64_tr_b16 v[{r+2}:{r+3}], v{AD[t]} offset:{8192*hf+4096}")

        def mfma(hf, t):
            r = 48 + 32 * hf + 4 * t
            d = 16 + 4 * t
            self.a(f"v_mfma_f32_16x16x32_bf16 v[{d}:{d+3}], v[{8+4*hf}:{11+4*hf}], v[{r}:{r+3}], v[{d}:{d+3}]")

        p_prep()
        addrs()
        self.a(f"s_branch {self.lab('v_poll0')}")
        top = self.lab("v_loop")
        self.a(f".p2align 3\n{top}:")
        for hf in range(2):
            fast, nxt = self.lab(f"v_fast{hf}"), self.lab(f"v_next{hf}")
            if hf == 0:
                addrs()
            self.a(f"s_cmp_ge_i32 s26, s27\ns_cbranch_scc1 {fast}")
            for t in range(8):
                self.a(f"s_waitcnt lgkmcnt({14-2*t})")
                mfma(1 - hf, t)
            if hf == 0:
                self.a("ds_write_b32 v122, v123")
            self.a(f"{self.lab(f'v_poll{hf}')}:")
            self.lds_wait("s26", "s27", "v121", "v1", cached=False)
            head(hf)
            for t in range(8):
                reads(hf, t)
            self.a(f"s_branch {nxt}\n{fast}:")
            head(hf)
            for t in range(8):
                self.a("s_waitcnt lgkmcnt(14)")
                mfma(1 - hf, t)
                reads(hf, t)
            if hf == 0:
                self.a("ds_write_b32 v122, v123")
            self.a(f"{nxt}:\ns_add_i32 s27, s27, 2")
        self.a(f"s_cmp_gt_i32 s27, 512\ns_cbranch_scc1 {self.lab('v_done')}")
        p_prep()
        self.a("v_add_u32 v118, 0x80, v118\nv_add_u32 v123, 1, v123")
        self.next_slot("s25")
        self.a(f"s_branch {top}\n{self.lab('v_done')}:")
        def pick(t):
            self.a(f"v_mov_b32_dpp v{16+4*(t%2)}, v{16+4*t} quad_perm:[0,1,2,3] row_mask:{1<<(t//2):#x} bank_mask:0xf")
        for t in range(8):
            self.a(f"s_waitcnt lgkmcnt({14-2*t})")
            mfma(1, t)
            if t >= 6:
                pick(t - 4)
        pick(4)
        self.a("s_nop 0")
        pick(5)
        self.a("s_nop 0")
        pick(6)
        self.a("s_nop 1")
        pick(7)
        self.a("""
        v_cvt_pk_bf16_f32 v16, v16, v20
        ds_write_b32 v126, v16
        s_waitcnt lgkmcnt(0)
        s_barrier
        """)
        self.stamp(3)
        self.stamp_flush(4)
        self.a("s_endpgm")

    def weights(self):
        c = self.c
        wpol, wqpol = c["wpol"], c["wqpol"]
        NQ, NW = c["NQ"], c["NW"]
        self.a("""
        s_load_dwordx16 s[36:51], s[0:1], 0
        s_load_dwordx4 s[52:55], s[0:1], 72
        s_sub_u32 s33, s3, 2
        s_lshr_b32 s4, s2, 5
        s_and_b32 s5, s2, 31
        """)
        self.a("""
        v_lshrrev_b32 v9, 4, v0
        v_and_b32 v10, 15, v0
        s_lshl_b32 s6, s4, 10
        v_lshlrev_b32 v3, 4, v0
        v_add_u32 v3, s6, v3
        s_lshl_b32 s34, s33, 2
        s_lshl_b32 s6, s33, 14
        s_lshl_b32 s35, s5, 8
        s_add_u32 s6, s6, s35
        v_lshlrev_b32 v2, 20, v9
        v_lshl_add_u32 v2, v10, 4, v2
        v_add_u32 v18, s6, v2
        """)
        self.masks()
        self.a(f"s_lshl_b32 s90, s4, 1" if c["rot"] else "s_mov_b32 s90, 0")
        self.a("s_lshl_b32 s91, s90, 16\ns_lshl_b32 s6, s90, 4\nv_xor_b32 v8, s6, v3\ns_waitcnt lgkmcnt(0)")
        self.srd(8, 36, 8192)
        self.srd(12, 42, 4 << 20)
        self.a("buffer_load_dwordx4 v[4:7], v3, s[8:11], 0 offen\nbuffer_load_dword v8, v8, s[8:11], s34 offen")

        def wq_load(t):
            r = 32 + 4 * t
            self.a(f"s_xor_b32 s59, s91, {(8*(t//2)+t%2)*8192}")
            self.a(f"buffer_load_dwordx4 v[{r}:{r+3}], v18, s[12:15], s59 offen {wqpol}")

        for t in range(NQ):
            wq_load(t)
        self.a("s_barrier")
        self.stamp(1)
        self.a(f"s_waitcnt vmcnt({NQ})")
        self.stamp(2)
        issued = [NQ]

        def more(k=1):
            for _ in range(k):
                if issued[0] < 32:
                    self.a(f"s_waitcnt vmcnt({NQ-1})")
                    wq_load(issued[0])
                    issued[0] += 1

        more(NQ)
        for i in range(4):
            self.a(f"v_lshlrev_b32 v{160+2*i}, 16, v{4+i}\nv_and_b32 v{161+2*i}, 0xffff0000, v{4+i}")
        self.a("""
        v_add_f32 v1, v160, v161
        v_add_f32 v2, v162, v163
        v_add_f32 v3, v164, v165
        v_add_f32 v11, v166, v167
        v_add_f32 v1, v1, v2
        v_add_f32 v3, v3, v11
        v_add_f32 v1, v1, v3
        """)
        self.wave_red("v_add_f32", "v1")
        self.a("v_mul_f32 v1, 0x3b000000, v1\ns_nop 0\nv_readlane_b32 s6, v1, 63\ns_nop 1")
        for i in range(8):
            self.a(f"v_subrev_f32 v{160+i}, s6, v{160+i}")
        self.a("v_mul_f32 v1, v160, v160\nv_mul_f32 v2, v161, v161")
        for i in range(2, 8):
            self.a(f"v_fmac_f32 v{1+i%2}, v{160+i}, v{160+i}")
        self.a("v_add_f32 v1, v1, v2")
        self.wave_red("v_add_f32", "v1")
        self.a("v_mul_f32 v1, 0x3b000000, v1\ns_nop 0\nv_readlane_b32 s35, v1, 63\nv_mov_b32 v2, s6")
        self.bf16r("v2", "v2")
        self.a("v_mov_b32 v1, s35")
        self.bf16r("v1", "v1")
        self.a("v_add_f32 v1, 0x3727c5ac, v1")
        self.bf16r("v1", "v1")
        self.a("v_sqrt_f32 v1, v1\ns_nop 0")
        self.bf16r("v1", "v1")
        self.a(f"""
        v_rcp_f32 v1, v1
        v_lshlrev_b32 v16, 16, v8
        v_and_b32 v17, 0xffff0000, v8
        v_sub_f32 v16, v16, v2
        v_sub_f32 v17, v17, v2
        v_cvt_pk_bf16_f32 v17, v16, v17
        v_lshlrev_b32 v16, 16, v17
        v_and_b32 v17, 0xffff0000, v17
        v_mul_f32 v16, v16, v1
        v_mul_f32 v17, v17, v1
        v_cvt_pk_bf16_f32 v16, v16, v16
        v_cvt_pk_bf16_f32 v17, v17, v17
        v_lshlrev_b32 v11, 5, v10
        v_and_b32 v1, 16, v0
        v_add_u32 v11, v11, v1
        s_lshl_b32 s6, s33, 9
        v_add_u32 v11, s6, v11
        v_add_u32 v3, {self.QBUF}, v11
        v_mov_b32 v19, 1
        """)
        for t in range(32):
            a = 20 + 4 * (t % 2)
            self.build_a(a, f"v{16+t%2}", t // 2)
            if t + NQ >= issued[0] and issued[0] < 32:
                more()
            elif issued[0] - t - 1 < NQ:
                self.a(f"s_waitcnt vmcnt({issued[0]-t-1})\ns_nop 0")
            else:
                self.a("s_nop 1")
            r = 32 + 4 * t
            cc = "0" if t == 0 else "v[28:31]"
            self.a(f"v_mfma_f32_16x16x32_bf16 v[28:31], v[{a}:{a+3}], v[{r}:{r+3}], {cc}")
        self.a(f"""
        v_mov_b32 v18, {self.CNT}
        s_nop 6
        ds_write_b128 v3, v[28:31]
        s_mov_b64 exec, 1
        ds_add_u32 v18, v19
        s_mov_b64 exec, -1
        """)
        self.stamp(3)
        self.srd(16, 44, 4 << 20)
        self.srd(20, 48, 512 * 3584)
        self.srd(24, 50, 1792 * 1024)
        self.srd(28, 54, 1 << 20)
        self.a(f"""
        v_mov_b32 v28, 0
        v_mov_b32 v29, 0
        v_mov_b32 v30, 0
        v_mov_b32 v31, 0
        s_cmp_ge_u32 s5, 28
        s_cbranch_scc1 {self.lab('ffn_done')}
        """)
        self.a("""
        v_bfe_u32 v1, v0, 3, 1
        v_lshl_add_u32 v1, v9, 7, v1
        s_lshl_b32 s6, s33, 1
        v_add_u32 v1, s6, v1
        v_mul_u32_u24 v1, 3584, v1
        v_and_b32 v2, 7, v0
        v_lshl_add_u32 v1, v2, 4, v1
        s_lshl_b32 s6, s5, 7
        v_add_u32 v1, s6, v1
        """)
        for n in range(16):
            r = 32 + 4 * n
            self.a(f"s_xor_b32 s6, s90, {n}\ns_mulk_i32 s6, 28672")
            self.a(f"s_waitcnt vmcnt({NW-1})")
            self.a(f"buffer_load_dwordx4 v[{r}:{r+3}], v1, s[20:23], s6 offen {wpol}")
        self.a("""
        v_lshlrev_b32 v1, 14, v9
        v_lshl_add_u32 v1, v10, 4, v1
        s_lshl_b32 s6, s5, 16
        s_lshl_b32 s35, s33, 8
        s_add_u32 s6, s6, s35
        v_add_u32 v1, s6, v1
        s_lshl_b32 s91, s90, 10
        """)
        for n in range(16):
            r = 96 + 4 * n
            if n % 2 == 0:
                self.a(f"s_xor_b32 s6, s91, {n*1024}")
            self.a(f"s_waitcnt vmcnt({NW-1})")
            self.a(f"buffer_load_dwordx4 v[{r}:{r+3}], v1, s[24:27], s6 offen offset:{(n%2)*1024} {wpol}")
        self.a("s_waitcnt vmcnt(16)")
        for n in range(16):
            a = 20 + 4 * (n % 2)
            self.a(f"v_mov_b32_dpp v1, v16 row_newbcast:{n} row_mask:0xf bank_mask:0x3")
            self.a(f"v_mov_b32_dpp v1, v17 row_newbcast:{n} row_mask:0xf bank_mask:0xc")
            for d in range(4):
                self.a(f"v_and_b32 v{a+d}, v1, v{12+d}")
            r = 32 + 4 * n
            self.a(f"s_nop 1\nv_mfma_f32_16x16x32_bf16 v[28:31], v[{a}:{a+3}], v[{r}:{r+3}], v[28:31]")
        self.a(f"""
        v_and_b32 v1, 7, v0
        v_lshlrev_b32 v1, 5, v1
        v_and_b32 v2, 16, v0
        v_add_u32 v1, v1, v2
        v_and_b32 v2, 8, v0
        v_lshl_add_u32 v1, v2, 5, v1
        s_lshl_b32 s6, s33, 9
        s_add_u32 s6, s6, {self.FBUF}
        v_add_u32 v1, s6, v1
        s_mov_b32 exec_lo, 0x00ff00ff
        s_mov_b32 exec_hi, 0xff00ff00
        ds_write_b128 v1, v[28:31]
        s_mov_b64 exec, 1
        ds_add_u32 v18, v19 offset:4
        s_mov_b64 exec, -1
        v_add_u32 v2, 4, v18
        """)
        self.lds_wait("s6", "4", "v2", "v1", cached=False, sleep=1)
        self.a(f"v_xor_b32 v1, s90, v0\nv_lshlrev_b32 v1, 2, v1\nv_add_u32 v1, {self.FBUF}, v1")
        for k in range(4):
            self.a(f"ds_read2st64_b32 v[{20+2*k}:{21+2*k}], v1 offset0:{2*k} offset1:{2*k+1}")
        self.a("""
        s_waitcnt lgkmcnt(0)
        v_add_f32 v20, v20, v21
        v_add_f32 v22, v22, v23
        v_add_f32 v24, v24, v25
        v_add_f32 v26, v26, v27
        v_add_f32 v20, v20, v22
        v_add_f32 v24, v24, v26
        v_add_f32 v20, v20, v24
        """)
        self.bf16r("v1", "v20")
        self.a(f"""
        v_mul_f32 v2, {LOG2E | 0x80000000:#x}, v1
        v_exp_f32 v2, v2
        s_nop 0
        v_add_f32 v2, 1.0, v2
        v_rcp_f32 v2, v2
        s_nop 0
        v_mul_f32 v1, v1, v2
        v_cvt_pk_bf16_f32 v16, v1, v1
        s_waitcnt vmcnt(0)
        s_nop 0
        """)
        for n in range(16):
            a = 20 + 4 * (n % 2)
            self.build_a(a, "v16", n)
            r = 96 + 4 * n
            cc = "0" if n == 0 else "v[28:31]"
            self.a(f"s_nop 1\nv_mfma_f32_16x16x32_bf16 v[28:31], v[{a}:{a+3}], v[{r}:{r+3}], {cc}")
        self.a("s_nop 7")
        self.a(f"{self.lab('ffn_done')}:")
        for i in range(4):
            self.a(f"v_min_u32 v{4+i}, -2, v{28+i}")
        self.a("s_lshl_b32 s6, s2, 11\nv_add_u32 v11, s6, v11")
        self.stamp(4)
        self.a("""
        v_lshlrev_b32 v1, 12, v9
        v_lshl_add_u32 v1, v10, 4, v1
        s_lshl_b32 s6, s5, 17
        s_lshl_b32 s35, s33, 8
        s_add_u32 s6, s6, s35
        v_add_u32 v1, s6, v1
        s_mov_b32 s56, 0x05040100
        s_mov_b32 s57, 0x07060302
        """)
        self.xrot("s91", 15, 11)
        for s in range(4):
            for jj in range(4):
                if jj % 2 == 0:
                    self.a(f"s_xor_b32 s6, s91, {(32*s+jj)*1024}\ns_add_u32 s35, s6, 16384")
                for r in range(2):
                    self.a(f"buffer_load_dwordx4 v[{20+4*r}:{23+4*r}], v1, s[16:19], {('s6','s35')[r]} offen offset:{(jj%2)*1024} {wpol}")
                self.a("s_waitcnt vmcnt(0)")
                for d in range(4):
                    for r in range(2):
                        self.a(f"v_perm_b32 v{32+32*s+4*(2*d+r)+jj}, v{24+d}, v{20+d}, s{56+r}")
        self.a(f"""
        v_and_b32 v1, 48, v0
        v_add_u32 v1, {self.OBUF}, v1
        v_mov_b32 v2, -2
        s_mov_b32 s58, {0 if c['dry'] else 1}
        """)
        if c["dry"]:
            self.a(f"s_branch {self.lab('proj')}")
        self.a(f"{self.lab('wait_o')}:")
        self.stamp(5)
        self.a(f"v_mov_b32 v3, {self.CNT + 8}")
        self.lds_wait("s6", "1", "v3", "v8", cached=False, sleep=1)
        self.a(f"v_mov_b32 v3, {self.LANDED}")
        self.lds_wait("s6", str(c["BPUB"] - 48), "v3", "v8", cached=False, sleep=64)
        self.lds_wait("s6", str(c["BPUB"]), "v3", "v8", cached=False, sleep=2)
        self.a(f"""
        s_mov_b32 s59, {WS_B:#x}
        s_cmp_ge_u32 s5, 28
        s_cbranch_scc1 {self.lab('no_b')}
        s_mov_b32 exec_hi, 0
        buffer_store_dwordx4 v[4:7], v11, s[28:31], s59 offen sc1
        s_mov_b32 exec_hi, -1
        {self.lab('no_b')}:
        s_mov_b32 s58, 1
        s_barrier
        """)
        self.stamp(6)
        self.a(f".p2align 3\n{self.lab('proj')}:")
        for s in range(4):
            self.a(f"ds_read_b128 v[{12+4*s}:{15+4*s}], v1 offset:{s*64}")

        def fin(e):
            d = 160 + 4 * e
            if e < 4:
                self.a(f"v_min_u32 v{28+e}, v{d}, v2")
            else:
                self.a(f"v_min_u32_dpp v{24+e}, v{d}, v2 quad_perm:[0,1,2,3] row_mask:0xa bank_mask:0xf")

        for e in range(8):
            d = 160 + 4 * e
            for s in range(4):
                if e == 0:
                    self.a(f"s_waitcnt lgkmcnt({3-s})")
                r = 32 + 32 * s + 4 * e
                cc = "0" if s == 0 else f"v[{d}:{d+3}]"
                self.a(f"v_mfma_f32_16x16x32_bf16 v[{d}:{d+3}], v[{12+4*s}:{15+4*s}], v[{r}:{r+3}], {cc}")
            if e >= 2:
                fin(e - 2)
        self.a(f"s_cmp_eq_u32 s58, 0\ns_nop 2")
        fin(6)
        self.a("s_nop 1")
        fin(7)
        self.a(f"""
        s_cbranch_scc1 {self.lab('wait_o')}
        s_mov_b32 exec_hi, 0
        buffer_store_dwordx4 v[28:31], v11, s[28:31], 0 offen sc1
        """)
        self.stamp(7)
        self.stamp_flush(8)
        self.a("s_endpgm")

    def aux(self):
        c = self.c
        self.a(f"{self.lab('aux')}:")
        self.a("""
        s_load_dwordx2 s[36:37], s[0:1], 0
        s_load_dwordx2 s[50:51], s[0:1], 64
        s_load_dwordx4 s[52:55], s[0:1], 72
        s_lshr_b32 s4, s2, 5
        s_and_b32 s5, s2, 31
        """)
        if c["prefetch"]:
            self.a(f"""
            s_getpc_b64 s[92:93]
            {self.lab('pc')}:
            s_sub_u32 s92, s92, {self.lab('pc')}-{c['name']}
            s_subb_u32 s93, s93, 0
            s_and_b32 s93, s93, 0xffff
            s_mov_b32 s94, {self.lab('end')}-{c['name']}
            s_mov_b32 s95, 0x20000
            s_lshr_b32 s6, s2, 3
            s_lshl_b32 s6, s6, 9
            v_lshlrev_b32 v1, 7, v0
            s_mov_b64 exec, 15
            buffer_load_dword v3, v1, s[92:95], s6 offen
            s_mov_b64 exec, -1
            """)
        self.a(f"""
        s_lshl_b32 s6, s2, 11
        v_lshlrev_b32 v1, 4, v0
        v_mov_b32 v20, -1
        v_mov_b32 v21, -1
        v_mov_b32 v22, -1
        v_mov_b32 v23, -1
        s_add_u32 s35, s6, {WS_B:#x}
        s_lshl_b32 s33, s4, 5
        v_mov_b32 v15, s33
        v_mov_b32 v19, 1
        v_mov_b32 v18, {self.CNT + 8}
        s_waitcnt lgkmcnt(0)
        """)
        self.srd(28, 54, 1 << 20)
        self.srd(60, 52, 256)
        self.a(f"""
        buffer_store_dwordx4 v[20:23], v1, s[28:31], s6 offen sc1
        buffer_store_dwordx4 v[20:23], v1, s[28:31], s6 offen offset:1024 sc1
        s_cmp_ge_u32 s5, 28
        s_cbranch_scc1 {self.lab('no_bclear')}
        buffer_store_dwordx4 v[20:23], v1, s[28:31], s35 offen sc1
        buffer_store_dwordx4 v[20:23], v1, s[28:31], s35 offen offset:1024 sc1
        {self.lab('no_bclear')}:
        s_barrier
        s_waitcnt vmcnt(0)
        s_mov_b64 exec, 1
        buffer_atomic_add v19, v15, s[60:63], 0 offen
        ds_write_b32 v18, v19
        s_mov_b64 exec, -1
        """)
        self.a(f"""
        v_lshrrev_b32 v1, 2, v0
        v_lshlrev_b32 v1, 11, v1
        v_and_b32 v2, 3, v0
        v_lshl_add_u32 v1, v2, 4, v1
        s_lshl_b32 s6, s4, 16
        s_lshl_b32 s35, s5, 6
        s_add_u32 s6, s6, s35
        v_add_u32 v8, s6, v1
        v_add_u32 v9, 0x8000, v8
        v_lshlrev_b32 v2, 3, v2
        v_bfe_u32 v1, v0, 4, 1
        v_lshl_add_u32 v2, v1, 2, v2
        v_bfe_u32 v1, v0, 5, 1
        v_lshl_add_u32 v2, v1, 1, v2
        s_lshl_b32 s6, s4, 10
        s_lshl_b32 s35, s5, 5
        s_add_u32 s6, s6, s35
        v_add_u32 v10, s6, v2
        v_mov_b32 v16, {self.LANDED}
        s_add_u32 s27, s5, {c['CHECK']}
        """)
        self.srd(8, 36, 8192)
        self.srd(12, 50, 8192)
        self.lds_wait("s26", "s27", "v16", "v1", cached=False, sleep=32)
        spin = self.lab("cnt_spin")
        self.a(f"""
        buffer_load_ushort v11, v10, s[8:11], 0 offen
        s_branch {spin}_in
        {spin}:
        s_sleep 32
        {spin}_in:
        """)
        self.budget()
        self.a(f"""
        buffer_load_dword v1, v15, s[60:63], 0 offen sc1
        s_waitcnt vmcnt(0)
        v_readfirstlane_b32 s6, v1
        s_cmp_ge_u32 s6, 32
        s_cbranch_scc0 {spin}
        v_lshlrev_b32 v11, 16, v11
        """)
        self.a(f"""
        v_add_u32 v13, {WS_B:#x}, v8
        v_add_u32 v14, {WS_B:#x}, v9
        v_mov_b32 v1, 0x200000
        v_cmp_le_u32 vcc, 48, v0
        s_mov_b32 s58, 0
        s_nop 0
        v_cndmask_b32 v14, v14, v1, vcc
        """)
        self.stamp(1)
        self.a("s_barrier")
        poll = self.lab("gather")
        self.a(f".p2align 3\n{poll}:")
        self.budget()
        self.a(f"""
        buffer_load_dwordx4 v[20:23], v13, s[28:31], 0 offen sc1
        buffer_load_dwordx4 v[24:27], v14, s[28:31], 0 offen sc1
        s_waitcnt vmcnt(0)
        v_max3_u32 v1, v20, v21, v22
        v_max3_u32 v2, v23, v24, v25
        v_max3_u32 v1, v1, v26, v27
        v_max_u32 v1, v1, v2
        v_cmp_eq_u32 vcc, -1, v1
        s_and_b64 exec, exec, vcc
        s_cbranch_execnz {poll}
        s_mov_b64 exec, -1
        """)
        self.stamp(2)
        for i in range(4):
            self.a(f"v_add_f32 v{20+i}, v{20+i}, v{24+i}")
        self.a("""
        s_nop 0
        v_permlane32_swap_b32 v20, v21
        v_permlane32_swap_b32 v22, v23
        v_add_f32 v20, v20, v21
        v_add_f32 v22, v22, v23
        s_nop 1
        v_permlane16_swap_b32 v20, v22
        v_add_f32 v20, v20, v22
        """)
        for sh in (4, 8):
            self.a(f"s_nop 1\nv_add_f32_dpp v20, v20, v20 row_ror:{sh} {DPPALL}")
        self.bf16r("v20", "v20")
        self.a(f"""
        s_cmp_lg_u32 s58, 0
        s_cbranch_scc1 {self.lab('finish')}
        v_mov_b32 v12, v20
        v_mov_b32 v13, v8
        v_mov_b32 v14, v9
        s_mov_b32 s58, 1
        s_branch {poll}
        {self.lab('finish')}:
        v_add_f32 v20, v11, v20
        """)
        self.bf16r("v20", "v20")
        self.a("""
        v_add_f32 v20, v20, v12
        v_cvt_pk_bf16_f32 v20, v20, v20
        s_mov_b32 exec_lo, 0x000f000f
        s_mov_b32 exec_hi, 0x000f000f
        buffer_store_short v20, v10, s[12:15], 0 offen
        """)
        if c["stamps"]:
            self.a("s_waitcnt vmcnt(0)")
        self.stamp(3)
        self.stamp_flush(6)
        self.a(f"{self.lab('end')}:\ns_endpgm")

    def body(self):
        n = self.c["name"]
        self.L.append(f".globl {n}\n.p2align 8\n.type {n},@function\n{n}:")
        if self.c["stamps"]:
            self.a("s_mov_b64 s[72:73], 0\ns_mov_b64 s[74:75], 0")
        self.entry()
        self.loader()
        self.roles()
        self.weights()
        self.consumer()
        self.aux()
        return "\n".join(self.L)

    def kd(self):
        n = self.c["name"]
        return f""".p2align 6
.amdhsa_kernel {n}
  .amdhsa_next_free_vgpr 192
  .amdhsa_next_free_sgpr 100
  .amdhsa_accum_offset 192
  .amdhsa_group_segment_fixed_size 0
  .amdhsa_kernarg_size 88
  .amdhsa_user_sgpr_count 2
  .amdhsa_user_sgpr_kernarg_segment_ptr 1
  .amdhsa_system_sgpr_workgroup_id_x 1
  .amdhsa_float_denorm_mode_32 3
.end_amdhsa_kernel"""


HEADER = open("cdna_kernels/" + NAME + ".s.ref").read().split("; Override launch geometry")[0]


def single(path, **kw):
    g = Gen(**kw)
    s = HEADER
    s += f"; @launch grid=(256,1,1) block=({64*NWAVES},1,1) lds={g.LDS_BYTES}\n"
    s += '.amdgcn_target "amdgcn-amd-amdhsa--gfx950"\n.text\n' + g.body() + '\n.section .rodata,"a"\n' + g.kd() + "\n"
    open(path, "w").write(s)


if __name__ == "__main__":
    out = sys.argv[1] if len(sys.argv) > 1 else "cdna_kernels/" + NAME + ".s"
    kw = {}
    for x in sys.argv[2:]:
        k, v = x.split("=", 1)
        try:
            v = eval(v)
        except Exception:
            pass
        kw[k] = v
    single(out, **kw)
```

```python
import struct
import sys

NAME = "parallel_sum__mha_block_cached__dense_activation_silu__decode"

DEFAULT = dict(
    LEVELS=(16, 17, 18, 19, 20, 22, 24, 27),
    BASE=3,
    perm="0135267894",
    CSTART=64,
    CEND=492,
    PERIOD=8,
    K=0.45,
    FB=3.85,
    FBX=0.4, FBXEND=290,
    PAR=0.4,
    XSTART=96, XP=32, XEND=480,
    G=1.5,
    GEND=0.8,
    GI=0.07,
    NSLOT=9,
    NQ=3,
    PF=12,
    PFD=26,
    lite=False,
    name=NAME + "_kernel",
)

WS_P = 0x80000
WS_X = 0x82000
WS_BYTES = 0x84000
LOG2E = 0x3FB8AA3B
SCALE = 0x3DB504F3
DPPALL = "row_mask:0xf bank_mask:0xf"
COH = "sc0 sc1"
NWAVES = 7

DOC = """\
;
;
;
"""


def f2u(x):
    return struct.unpack('<I', struct.pack('<f', x))[0]


class Gen:
    def __init__(self, **kw):
        self.c = dict(DEFAULT)
        self.c.update(kw)
        self.L = []
        self.uid = 0
        self.RINGEND = self.c["NSLOT"] * 0x4000
        self.SBUF = self.RINGEND
        m = self.SBUF + 0x2100
        self.LANDED = m
        self.CONSUMED = m + 0x100
        self.LEVEL = m + 0x200
        self.CNT = m + 0x300
        self.QBUF = m + 0x400
        self.QPK = m + 0xC00
        self.OBUF = m + 0xD00
        self.FBUF = m + 0xE00
        self.LDS_BYTES = m + 0x1600
        assert self.LDS_BYTES <= 160 * 1024

    def a(self, s):
        for line in s.strip("\n").split("\n"):
            line = line.strip()
            if not line:
                continue
            self.L.append(line if line.endswith(":") and not line.startswith(";") else "    " + line)

    def cm(self, s):
        for line in s.strip("\n").split("\n"):
            self.L.append("    ; " + line.strip())

    def title(self, s):
        self.L.append("; " + "-" * 100)
        for line in s.strip("\n").split("\n"):
            self.L.append("; " + line.strip())
        self.L.append("; " + "-" * 100)

    def new(self, n):
        self.uid += 1
        return f"L_{n}{self.uid}"

    def budget(self):
        self.a("s_sub_u32 s7, s7, 1\ns_cbranch_scc1 L_end")

    def bf16r(self, d, s):
        self.a(f"v_cvt_pk_bf16_f32 {d}, {s}, {s}\nv_and_b32 {d}, 0xffff0000, {d}")

    def wave_red(self, op, v):
        for sh in (8, 4, 2, 1):
            self.a(f"s_nop 1\n{op}_dpp {v}, {v}, {v} row_ror:{sh} {DPPALL}")
        self.a(f"s_nop 1\n{op}_dpp {v}, {v}, {v} row_bcast:15 row_mask:0xa bank_mask:0xf")
        self.a(f"s_nop 1\n{op}_dpp {v}, {v}, {v} row_bcast:31 row_mask:0xc bank_mask:0xf")

    def srd(self, r, p, size, what):
        self.a(f"s_mov_b32 s{r}, s{p}    ; SRD {what}\ns_and_b32 s{r+1}, s{p+1}, 0xffff\n"
               f"s_mov_b32 s{r+2}, {size:#x}\ns_mov_b32 s{r+3}, 0x20000")

    def build_a(self, dst, p, n):
        for d in range(4):
            self.a(f"v_and_b32_dpp v{dst+d}, {p}, v{12+d} row_newbcast:{n} {DPPALL}")

    def lds_wait(self, sreg, need, vaddr, vt, cached=True, sleep=0):
        go, poll = self.new("go"), self.new("poll")
        if cached:
            self.a(f"s_cmp_ge_i32 {sreg}, {need}\ns_cbranch_scc1 {go}")
        self.a(f"{poll}:")
        self.budget()
        if sleep:
            self.a(f"s_sleep {sleep}")
        self.a(f"""
        ds_read_b32 {vt}, {vaddr}
        s_waitcnt lgkmcnt(0)
        v_readfirstlane_b32 {sreg}, {vt}
        s_cmp_ge_i32 {sreg}, {need}
        s_cbranch_scc0 {poll}
        {go}:
        """)

    def xrot(self, d, sh_lo, sh_hi):
        self.a(f"""
        s_bfe_u32 {d}, s2, 0x20005
        s_lshl_b32 {d}, {d}, {sh_lo}
        s_lshr_b32 s35, s2, 7
        s_lshl_b32 s35, s35, {sh_hi}
        s_or_b32 {d}, {d}, s35
        """)

    def next_slot(self, s):
        self.a(f"s_add_u32 {s}, {s}, 0x4000\ns_cmp_eq_u32 {s}, {self.RINGEND:#x}\ns_cselect_b32 {s}, 0, {s}")

    def entry(self):
        c = self.c
        self.cm("s2 = workgroup = 32 b + h, s3 = wave, v0 = lane, s7 = spin budget\n"
                "s[36:51] = x K V wq wo (B_x) w1 w2, s[52:53] = out, s[54:55] = debug, s[56:57] = ws")
        self.a(f"""
        v_lshrrev_b32 v1, 6, v0
        s_cmp_ge_u32 s2, 256
        s_cbranch_scc1 L_end
        v_readfirstlane_b32 s3, v1
        v_and_b32 v0, 63, v0
        s_mov_b32 s7, 0x100000
        s_cmp_eq_u32 s3, 1
        s_cbranch_scc0 L_args
        v_lshlrev_b32 v2, 2, v0
        v_add_u32 v2, {self.LANDED}, v2
        v_mov_b32 v4, 0
        v_mov_b32 v5, {c['BASE']}
        ds_write2st64_b32 v2, v4, v4 offset0:0 offset1:1
        ds_write2st64_b32 v2, v5, v4 offset0:2 offset1:3
        s_waitcnt lgkmcnt(0)
        s_barrier
        s_branch L_consumer
        L_args:
        s_load_dwordx16 s[36:51], s[0:1], 0
        s_load_dwordx4 s[52:55], s[0:1], 64
        s_load_dwordx2 s[56:57], s[0:1], 80
        """)
        if c["lite"]:
            self.a("s_memrealtime s[64:65]")
        self.a("s_barrier\ns_cmp_lg_u32 s3, 0\ns_cbranch_scc1 L_roles")

    def loader(self):
        c = self.c
        LV = c["LEVELS"]
        perm = [int(x) + 10 for x in c["perm"]]
        assert perm[:2] == [10, 11] and sorted(perm) == list(range(10, 20))
        self.title("""loader.  chunk = 16 pieces of 1 KiB (64 keys) = one ring slot; quarter = 4 pieces, contiguous in memory
        s24 = source offset of the chunk, s25 = ring slot, s26 = chunks consumed (cached), s27 = chunks that must be
        consumed, s28 = 4 * chunk, s29 = s28 of the next event, s31 = level.   v16+p = lane offsets of piece p:
        K: 16-byte block c of a row of piece p is stored at block c ^ p (conflict-free MFMA fragment reads)""")
        self.a(f"""
        s_setprio 3
        v_lshlrev_b32 v16, 4, v0
        v_lshlrev_b32 v2, 2, v0
        v_add_u32 v2, {self.LANDED}, v2
        v_xor_b32 v20, 64, v16
        v_xor_b32 v24, 0x80, v16
        v_xor_b32 v28, 64, v24
        """)
        for p in range(16):
            if p % 4:
                self.a(f"v_xor_b32 v{16+p}, {(p%4)*16}, v{16+p//4*4}")
        self.a(f"""
        v_mov_b32 v3, {self.CONSUMED}
        s_lshl_b32 s6, s2, 20
        s_mov_b32 s18, 0x100000
        s_mov_b32 s19, 0x20000
        s_mov_b64 s[24:25], 0
        s_mov_b32 s26, 0
        s_mov_b32 s27, {1 - c['NSLOT']}
        s_mov_b32 s28, 0
        s_mov_b32 s29, {4 * c['PF']}
        s_waitcnt lgkmcnt(0)
        s_add_u32 s16, s38, s6
        s_addc_u32 s17, s39, 0
        s_and_b32 s17, s17, 0xffff
        """)

        def body(i):
            D = LV[i]
            self.cm(f"one chunk with at most {D} pieces in flight; landed quarters are posted as the waits cover them")
            self.a(f".p2align 3\nL_ld_d{i}:")
            for p in range(16):
                if p % 4 == 0:
                    self.a(f"s_add_u32 m0, s25, {(p//4)*4096}")
                    self.a(f"s_xor_b32 s23, s24, {(((p>>2)&1)<<perm[2]) | (((p>>3)&1)<<perm[3])}")
                self.a(f"s_waitcnt vmcnt({D-1})")
                self.a(f"buffer_load_dwordx4 v{16+p}, s[16:19], s23 offen offset:{(p%4)*1024} nt lds")
                if (p - D + 1) % 4 == 0:
                    self.a(f"s_add_i32 s30, s28, {(p-D+1)//4}\nv_mov_b32 v4, s30\nds_write_b32 v2, v4")
                if p == 8:
                    self.a("ds_read2st64_b32 v[6:7], v3 offset0:0 offset1:1")
                if p == 12:
                    self.a("s_waitcnt lgkmcnt(0)\nv_readfirstlane_b32 s26, v6\nv_readfirstlane_b32 s31, v7")
            self.a("s_branch L_ld_top")

        body(c["BASE"])
        hot, self.L = self.L, []
        self.title("loader, continued: per-chunk bookkeeping, events, the other depths")
        self.a("L_ld_top:")
        self.next_slot("s25")
        self.a("""
        s_add_i32 s27, s27, 1
        s_add_i32 s28, s28, 4
        s_cmp_eq_u32 s28, s29
        s_cbranch_scc1 L_ld_event
        L_ld_go:
        """)
        self.cm("source offset: the chunk number's bits are scattered over the address (DRAM page locality);\n"
                "K and V are walked in the same order")
        runs = []
        for k in range(6):
            sh = perm[4 + k] - (2 + k)
            if runs and runs[-1][0] == sh:
                runs[-1][1] |= 1 << (2 + k)
            else:
                runs.append([sh, 1 << (2 + k)])
        for i, (sh, mask) in enumerate(runs):
            d = "s24" if i == 0 else "s22"
            self.a(f"s_and_b32 {d}, s28, {mask:#x}\ns_lshl_b32 {d}, {d}, {sh}")
            if i:
                self.a("s_or_b32 s24, s24, s22")
        self.cm("the slot must be free")
        self.lds_wait("s26", "s27", "v3", "v5")

        def dispatch(lo, hi):
            if lo == hi:
                self.a(f"s_branch L_ld_d{lo}")
                return
            mid = (lo + hi + 1) // 2
            if mid == hi:
                self.a(f"s_cmp_ge_i32 s31, {mid}\ns_cbranch_scc1 L_ld_d{hi}")
                dispatch(lo, mid - 1)
            else:
                up = self.new("ld_up")
                self.a(f"s_cmp_ge_i32 s31, {mid}\ns_cbranch_scc1 {up}")
                dispatch(lo, mid - 1)
                self.a(f"{up}:")
                dispatch(mid, hi)

        dispatch(0, len(LV) - 1)
        self.a(f"L_ld_event:\ns_cmp_lg_u32 s28, {4 * c['PF']}\ns_cbranch_scc1 L_ld_ev_v")
        self.pf_code()
        self.a("s_mov_b32 s29, 256\ns_branch L_ld_go\nL_ld_ev_v:\ns_cmp_lg_u32 s28, 256\ns_cbranch_scc1 L_ld_ev_end")
        self.cm("switch to V: 32-byte block t of row r is stored at block t ^ (r & 7) (transposing reads)")
        self.a("v_lshrrev_b32 v17, 4, v0\nv_lshlrev_b32 v17, 5, v17\nv_xor_b32 v16, v16, v17\nv_xor_b32 v17, 0x80, v16")
        for p in range(2, 16):
            self.a(f"v_mov_b32 v{16+p}, v{16+p%2}")
        self.a("""
        s_add_u32 s16, s40, s6
        s_addc_u32 s17, s41, 0
        s_and_b32 s17, s17, 0xffff
        s_mov_b32 s29, 512
        s_branch L_ld_go
        L_ld_ev_end:
        """)
        self.cm("drain; the last quarter is announced with barrier 1")
        for r in range((max(LV) - 1) // 4 * 4, 0, -4):
            self.a(f"v_mov_b32 v4, {(2048-r)//4}\ns_waitcnt vmcnt({r})\nds_write_b32 v2, v4")
        self.a("s_waitcnt vmcnt(0)\ns_barrier\ns_endpgm")
        for i in range(len(LV)):
            if i != c["BASE"]:
                body(i)
        self.loader_cold, self.L = self.L, hot

    def pf_code(self):
        D = self.c["PFD"]
        self.cm("L2 prefetch while the ring is full: every byte of wo, w2 and w1 is fetched from memory once, by a\n"
                "workgroup that normally shares an L2 with the ones that use it (16 + 8 + 8 KiB each, data dropped)")

        def load(srd, voff, imm):
            self.a(f"s_waitcnt vmcnt({D-1})\nbuffer_load_dwordx4 v[32:35], {voff}, s[{srd}:{srd+3}], s34 offen offset:{imm}")

        self.srd(8, 44, 4 << 20, "wo")
        self.srd(12, 50, 1792 * 1024, "w2")
        self.srd(60, 48, 512 * 3584, "w1")
        self.a("""
        v_lshlrev_b32 v8, 4, v0
        s_bfe_u32 s4, s2, 0x10005
        s_lshl_b32 s4, s4, 12
        s_bfe_u32 s5, s2, 0x10006
        s_lshl_b32 s5, s5, 14
        s_or_b32 s4, s4, s5
        s_lshr_b32 s5, s2, 7
        s_lshl_b32 s33, s5, 16
        s_or_b32 s33, s33, s4
        s_and_b32 s34, s2, 31
        s_lshl_b32 s34, s34, 17
        s_or_b32 s33, s33, s34
        """)
        for q in range(4):
            self.a(f"s_or_b32 s34, s33, {((q & 1) << 13) | ((q >> 1) << 15)}")
            for k in range(4):
                load(8, "v8", 1024 * k)
        self.a("""
        s_and_b32 s35, s2, 7
        s_cmp_eq_u32 s35, 7
        s_cbranch_scc1 L_pf_done
        s_lshl_b32 s5, s5, 15
        s_or_b32 s4, s4, s5
        s_lshl_b32 s5, s35, 18
        s_or_b32 s4, s4, s5
        s_bfe_u32 s5, s2, 0x20003
        s_lshl_b32 s5, s5, 16
        s_or_b32 s4, s4, s5
        """)
        for q in range(2):
            self.a(f"s_or_b32 s34, s4, {q << 13}")
            for k in range(4):
                load(12, "v8", 1024 * k)
        self.a("""
        v_lshrrev_b32 v9, 5, v0
        v_mul_u32_u24 v9, 3072, v9
        v_add_u32 v9, v9, v8
        s_lshr_b32 s34, s2, 3
        s_mul_i32 s34, s34, 57344
        s_lshl_b32 s35, s35, 9
        s_add_u32 s34, s34, s35
        """)
        for k in range(8):
            load(60, "v9", 0)
            if k < 7:
                self.a("s_add_u32 s34, s34, 7168")
        self.a("L_pf_done:")

    def consumer(self):
        c = self.c
        self.title("""consumer.  s25 = ring slot, s26 = quarters landed (cached), s27 = quarters needed, v123 = chunks consumed
        v112 / v113 = running max / sum of this lane's scores, v120 = this lane's score word in LDS""")
        self.a("L_consumer:\nv_add_u32 v122, 0x100, v2\ns_setprio 2")
        self.cm("K fragment addresses v4..v7: lane (kg, n), k-step s: n*1024 + ((4s + kg) ^ n) * 16")
        self.a("v_and_b32 v1, 15, v0\nv_lshrrev_b32 v2, 4, v0\nv_xor_b32 v2, v2, v1\nv_lshlrev_b32 v2, 4, v2\nv_lshl_add_u32 v4, v1, 10, v2")
        for s in range(1, 4):
            self.a(f"v_xor_b32 v{4+s}, {s*64}, v4")
        self.cm("lane (g, n) gets the score of key 4n + g; it is stored where the P V A fragments want it")
        self.a(f"""
        v_lshrrev_b32 v120, 4, v0
        v_bfe_u32 v1, v0, 2, 1
        v_lshl_add_u32 v120, v1, 2, v120
        v_and_b32 v1, 3, v0
        v_lshl_add_u32 v120, v1, 3, v120
        v_bfe_u32 v1, v0, 3, 1
        v_lshl_add_u32 v120, v1, 5, v120
        v_lshlrev_b32 v120, 1, v120
        v_add_u32 v120, {self.SBUF + 0x100}, v120
        v_mov_b32 v121, {self.LANDED}
        v_mov_b32 v112, 0xff7fffff
        v_mov_b32 v113, 0
        v_mov_b32 v123, 0
        v_mov_b32 v125, {self.CNT}
        s_mov_b32 s26, 0
        s_mov_b32 s25, 0x8000
        s_mov_b32 s27, 12
        s_mov_b32 s30, {LOG2E:#x}
        v_lshlrev_b32 v8, 3, v0
        v_add_u32 v8, {self.QBUF}, v8
        v_lshlrev_b32 v9, 2, v0
        v_add_u32 v9, {self.QPK}, v9
        v_and_b32 v10, 48, v0
        v_add_u32 v10, {self.QPK}, v10
        """)
        self.cm("while q is being computed, chunks 0..2 move into registers so that their ring slots are free again")
        PB = (128, 192, 48)
        for k in range(3):
            self.lds_wait("s26", str(4 * k + 4), "v121", "v1", sleep=1)
            for jb in range(4):
                for s in range(4):
                    r = PB[k] + (jb * 4 + s) * 4
                    self.a(f"ds_read_b128 v[{r}:{r+3}], v{4+s} offset:{k*0x4000 + jb*256}")
            self.a("v_add_u32 v123, 1, v123\ns_waitcnt lgkmcnt(0)\nds_write_b32 v122, v123")
        self.cm("q: add the four partial sums, round to bf16, read back as MFMA A fragments v16..v31 (all rows equal)")
        self.lds_wait("s29", "4", "v125", "v1", cached=False, sleep=1)
        for w in range(4):
            self.a(f"ds_read_b64 v[{32+2*w}:{33+2*w}], v8 offset:{w*512}")
        self.a("""
        s_waitcnt lgkmcnt(0)
        v_add_f32 v32, v32, v34
        v_add_f32 v33, v33, v35
        v_add_f32 v36, v36, v38
        v_add_f32 v37, v37, v39
        v_add_f32 v32, v32, v36
        v_add_f32 v33, v33, v37
        v_cvt_pk_bf16_f32 v32, v32, v33
        ds_write_b32 v9, v32
        """)
        for s in range(4):
            self.a(f"ds_read_b128 v[{16+4*s}:{19+4*s}], v10 offset:{s*64}")
        self.cm("chunk 2 (already in v48..v111) goes first, chunks 0 and 1 after chunk 63")
        self.a("s_waitcnt lgkmcnt(0)\ns_branch L_k_mfma")

        self.cm("---- K phase, one chunk per trip")
        self.a(".p2align 3\nL_k_loop:")
        for s in range(4):
            self.a(f"v_add_u32 v{8+s}, s25, v{4+s}")
        self.lds_wait("s26", "s27", "v121", "v1")
        for jb in range(4):
            for s in range(4):
                r = 48 + (jb * 4 + s) * 4
                self.a(f"ds_read_b128 v[{r}:{r+3}], v{8+s} offset:{jb*256}")
        self.a("v_add_u32 v123, 1, v123\nL_k_mfma:")
        for jb in range(4):
            self.a(f"s_waitcnt lgkmcnt({12-4*jb})")
            if jb == 3:
                self.a("ds_write_b32 v122, v123")
            d = 32 + 4 * jb
            for s in range(4):
                r = 48 + (jb * 4 + s) * 4
                cc = "0" if s == 0 else f"v[{d}:{d+3}]"
                self.a(f"v_mfma_f32_16x16x32_bf16 v[{d}:{d+3}], v[{16+4*s}:{19+4*s}], v[{r}:{r+3}], {cc}")
        self.next_slot("s25")
        self.a("s_add_i32 s27, s27, 4\ns_nop 3")
        for jb in range(1, 4):
            self.a(f"v_mov_b32_dpp v32, v{32+4*jb} quad_perm:[0,1,2,3] row_mask:{1<<jb:#x} bank_mask:0xf")
        self.cm("score = bf16(bf16(q.k) * 128^-0.5); running max and sum of exp")
        self.bf16r("v32", "v32")
        self.a(f"v_mul_f32 v32, {SCALE:#x}, v32")
        self.bf16r("v32", "v32")
        self.a("""
        ds_write_b16_d16_hi v120, v32
        v_max_f32 v114, v112, v32
        v_sub_f32 v115, v112, v114
        v_sub_f32 v116, v32, v114
        v_mul_f32 v115, s30, v115
        v_mul_f32 v116, s30, v116
        v_exp_f32 v115, v115
        v_exp_f32 v116, v116
        v_mov_b32 v112, v114
        v_add_u32 v120, 0x80, v120
        v_fma_f32 v113, v113, v115, v116
        s_cmp_le_i32 s27, 256
        s_cbranch_scc1 L_k_loop
        """)
        for k in range(2):
            self.a(f"s_cmp_lg_u32 s27, {260+4*k}\ns_cbranch_scc1 L_k_parked{k}")
            if k == 0:
                self.a("v_subrev_u32 v120, 0x2000, v120")
            for i in range(0, 64, 2):
                self.a(f"v_mov_b64 v[{48+i}:{49+i}], v[{PB[k]+i}:{PB[k]+i+1}]")
            self.a(f"s_branch L_k_mfma\nL_k_parked{k}:")
        self.a(f"s_mov_b32 s25, {(64 % c['NSLOT'])*0x4000}")
        self.cm("---- softmax statistics over the 4096 keys: s31 = max, s32 = 1 / sum of exp(score - max)")
        self.a("v_subrev_u32 v120, 0x100, v120\nds_read_u16 v117, v120\nv_mov_b32 v114, v112")
        self.wave_red("v_max_f32", "v114")
        self.a("""
        s_nop 0
        v_readlane_b32 s31, v114, 63
        s_nop 1
        v_subrev_f32 v115, s31, v112
        v_mul_f32 v115, s30, v115
        v_exp_f32 v115, v115
        s_nop 0
        v_mul_f32 v113, v113, v115
        """)
        self.wave_red("v_add_f32", "v113")
        self.xrot("s91", 6, 3)
        self.cm("v119 = V read address (row lane>>2, 8-byte piece lane&3), v118 = P fragment address,\n"
                "v126 = where this lane's pair of o goes (order of the output projection's contraction)")
        self.a(f"""
        v_rcp_f32 v113, v113
        s_nop 0
        v_readlane_b32 s32, v113, 63
        v_lshrrev_b32 v1, 2, v0
        v_lshlrev_b32 v119, 8, v1
        v_and_b32 v1, 7, v1
        v_lshl_add_u32 v119, v1, 5, v119
        v_and_b32 v1, 3, v0
        v_lshl_add_u32 v119, v1, 3, v119
        v_and_b32 v118, 48, v0
        v_add_u32 v118, {self.SBUF}, v118
        v_lshlrev_b32 v126, 2, v0
        v_xor_b32 v126, s91, v126
        v_bfe_u32 v1, v126, 2, 1
        v_bfe_u32 v2, v126, 3, 2
        v_and_b32 v126, 0xe0, v126
        v_lshl_add_u32 v126, v1, 4, v126
        v_lshl_add_u32 v126, v2, 2, v126
        v_add_u32 v126, {self.OBUF}, v126
        s_mov_b32 s27, 258
        s_waitcnt lgkmcnt(0)
        """)
        for i in range(0, 32, 2):
            self.a(f"v_mov_b64 v[{16+i}:{17+i}], 0")

        def p_prep():
            self.cm("p = bf16(exp(score - max) / sum) of the next chunk, stored over the score")
            self.a("""
            v_lshlrev_b32 v117, 16, v117
            v_subrev_f32 v117, s31, v117
            v_mul_f32 v117, s30, v117
            v_exp_f32 v117, v117
            s_nop 0
            v_mul_f32 v117, s32, v117
            v_cvt_pk_bf16_f32 v117, v117, v117
            ds_write_b16 v120, v117
            v_add_u32 v120, 0x80, v120
            """)

        AD = [112, 113, 114, 115, 116, 124, 125, 127]

        def addrs():
            self.a(f"v_add_u32 v{AD[0]}, s25, v119")
            for t in range(1, 8):
                self.a(f"v_xor_b32 v{AD[t]}, {t*32}, v{AD[0]}")

        def head(hf):
            self.a(f"ds_read_b128 v[{8+4*hf}:{11+4*hf}], v118 offset:{64*hf}")
            if hf == 0:
                self.a("ds_read_u16 v117, v120")

        def reads(hf, t):
            r = 48 + 32 * hf + 4 * t
            self.a(f"ds_read_b64_tr_b16 v[{r}:{r+1}], v{AD[t]} offset:{8192*hf}")
            self.a(f"ds_read_b64_tr_b16 v[{r+2}:{r+3}], v{AD[t]} offset:{8192*hf+4096}")

        def mfma(hf, t):
            r = 48 + 32 * hf + 4 * t
            d = 16 + 4 * t
            self.a(f"v_mfma_f32_16x16x32_bf16 v[{d}:{d+3}], v[{8+4*hf}:{11+4*hf}], v[{r}:{r+3}], v[{d}:{d+3}]")

        p_prep()
        addrs()
        self.a("s_branch L_v_poll0")
        self.cm("---- V phase, half a chunk (32 keys x 128) at a time into v16..v47 (8 tiles of 16 columns);\n"
                "the MFMAs of a half run in the next half: before its wait, or between its reads if there is no wait")
        self.a(".p2align 3\nL_v_loop:")
        for hf in range(2):
            if hf == 0:
                addrs()
            else:
                self.a("s_cmp_eq_u32 s27, 512\ns_cbranch_scc1 L_v_last")
            self.a(f"s_cmp_ge_i32 s26, s27\ns_cbranch_scc1 L_v_fast{hf}")
            for t in range(8):
                self.a(f"s_waitcnt lgkmcnt({14-2*t})")
                mfma(1 - hf, t)
            if hf == 0:
                self.a("ds_write_b32 v122, v123")
            self.a(f"L_v_poll{hf}:")
            self.lds_wait("s26", "s27", "v121", "v1", cached=False)
            head(hf)
            for t in range(8):
                reads(hf, t)
            self.a(f"s_branch L_v_next{hf}\nL_v_fast{hf}:")
            head(hf)
            for t in range(8):
                self.a("s_waitcnt lgkmcnt(14)")
                mfma(1 - hf, t)
                reads(hf, t)
            if hf == 0:
                self.a("ds_write_b32 v122, v123")
            self.a(f"L_v_next{hf}:\ns_add_i32 s27, s27, 2")
        p_prep()
        self.a("v_add_u32 v118, 0x80, v118\nv_add_u32 v123, 1, v123")
        self.next_slot("s25")
        self.a("s_branch L_v_loop\nL_v_last:")
        self.cm("last half: its second quarter is read after barrier 1")
        for t in range(8):
            self.a(f"s_waitcnt lgkmcnt({14-2*t})")
            mfma(0, t)
        head(1)
        self.lds_wait("s26", "511", "v121", "v1")
        for t in range(8):
            self.a(f"ds_read_b64_tr_b16 v[{80+4*t}:{81+4*t}], v{AD[t]} offset:8192")
        self.a("s_barrier")
        for t in range(8):
            self.a(f"ds_read_b64_tr_b16 v[{82+4*t}:{83+4*t}], v{AD[t]} offset:12288")

        def pick(t):
            self.a(f"v_mov_b32_dpp v{16+4*(t%2)}, v{16+4*t} quad_perm:[0,1,2,3] row_mask:{1<<(t//2):#x} bank_mask:0xf")

        self.cm("lane (g, n) <- o[32g + n], o[32g + 16 + n] as one bf16 pair -> LDS, barrier 2")
        for t in range(8):
            self.a(f"s_waitcnt lgkmcnt({7-t})")
            mfma(1, t)
            if t >= 6:
                pick(t - 4)
        pick(4)
        self.a("s_nop 0")
        pick(5)
        self.a("s_nop 0")
        pick(6)
        self.a("s_nop 1")
        pick(7)
        self.a("""
        v_cvt_pk_bf16_f32 v16, v16, v20
        ds_write_b32 v126, v16
        s_waitcnt lgkmcnt(0)
        s_barrier
        s_endpgm
        """)

    def weights(self):
        c = self.c
        NQ = c["NQ"]
        self.title("""weights waves.  s33 = w (0..3), s4 = b, s5 = h, lane = (v9 = g, v10 = c), s90 = 2b
        vector x matrix on row-major weights: a load brings 4 rows x 256 B (lane (g, c): row g, 8 columns) = the B
        operand; A = the 4 vector elements times an 8 x 8 identity, so D[j][c] accumulates column 8c + j.
        The 8 workgroups of a head walk its slices in different orders (index ^ 2b): one fetches, seven hit L2""")
        self.a("""
        L_roles:
        s_cmp_eq_u32 s3, 6
        s_cbranch_scc1 L_aux
        s_sub_u32 s33, s3, 2
        s_lshr_b32 s4, s2, 5
        s_and_b32 s5, s2, 31
        v_lshrrev_b32 v9, 4, v0
        v_and_b32 v10, 15, v0
        s_lshl_b32 s6, s4, 10
        v_lshlrev_b32 v3, 4, v0
        v_add_u32 v3, s6, v3
        s_lshl_b32 s90, s4, 1
        v_xor_b32 v8, s90, v10
        v_lshlrev_b32 v8, 4, v8
        v_lshl_add_u32 v8, v9, 8, v8
        s_lshl_b32 s34, s33, 2
        s_add_u32 s34, s34, s6
        s_lshl_b32 s6, s33, 14
        s_lshl_b32 s35, s5, 8
        s_add_u32 s6, s6, s35
        v_lshlrev_b32 v2, 20, v9
        v_lshl_add_u32 v2, v10, 4, v2
        v_add_u32 v18, s6, v2
        s_lshl_b32 s91, s90, 16
        s_waitcnt lgkmcnt(0)
        """)
        self.srd(8, 36, 8192, "x")
        self.srd(12, 42, 4 << 20, "wq")
        self.cm("x[b] (8 values per lane, for the statistics) and this lane's pair x[128g + 8(c ^ 2b) + 2w + {0,1}]")
        self.a("buffer_load_dwordx4 v[4:7], v3, s[8:11], 0 offen\nbuffer_load_dword v8, v8, s[8:11], s34 offen")
        self.cm("wq piece t = 2n + i -> v32 + 4t: rows 128g + 8(n ^ 2b) + 2w + i, columns 128h + 8c")

        def wq_load(t):
            r = 32 + 4 * t
            self.a(f"s_xor_b32 s59, s91, {(8*(t//2)+t%2)*8192}")
            self.a(f"buffer_load_dwordx4 v[{r}:{r+3}], v18, s[12:15], s59 offen")

        for t in range(NQ):
            wq_load(t)
        self.cm("v12..v15: identity masks, lane m owns bf16 slot m & 7 of an A fragment")
        self.a("""
        v_and_b32 v1, 1, v0
        v_lshlrev_b32 v1, 4, v1
        v_mov_b32 v2, 0xffff
        v_lshlrev_b32 v1, v1, v2
        v_bfe_u32 v2, v0, 1, 2
        """)
        for d in range(4):
            self.a(f"v_cmp_eq_u32 vcc, {d}, v2\ns_nop 1\nv_cndmask_b32 v{12+d}, 0, v1, vcc")
        issued = [NQ]

        def more(k=1):
            for _ in range(k):
                if issued[0] < 32:
                    self.a(f"s_waitcnt vmcnt({NQ-1})")
                    wq_load(issued[0])
                    issued[0] += 1

        more(NQ)
        self.cm("---- layernorm: xn = bf16(bf16(x - bf16(mean)) / bf16(sqrt(bf16(bf16(var) + 1e-5))))")
        for i in range(4):
            self.a(f"v_lshlrev_b32 v{160+2*i}, 16, v{4+i}\nv_and_b32 v{161+2*i}, 0xffff0000, v{4+i}")
        self.a("""
        v_add_f32 v1, v160, v161
        v_add_f32 v2, v162, v163
        v_add_f32 v3, v164, v165
        v_add_f32 v11, v166, v167
        v_add_f32 v1, v1, v2
        v_add_f32 v3, v3, v11
        v_add_f32 v1, v1, v3
        """)
        self.wave_red("v_add_f32", "v1")
        self.a("v_mul_f32 v1, 0x3b000000, v1\ns_nop 0\nv_readlane_b32 s6, v1, 63\ns_nop 1")
        for i in range(8):
            self.a(f"v_subrev_f32 v{160+i}, s6, v{160+i}")
        self.a("v_mul_f32 v1, v160, v160\nv_mul_f32 v2, v161, v161")
        for i in range(2, 8):
            self.a(f"v_fmac_f32 v{1+i%2}, v{160+i}, v{160+i}")
        self.a("v_add_f32 v1, v1, v2")
        self.wave_red("v_add_f32", "v1")
        self.a("v_mul_f32 v1, 0x3b000000, v1\ns_nop 0\nv_readlane_b32 s35, v1, 63\nv_mov_b32 v2, s6")
        self.bf16r("v2", "v2")
        self.a("v_mov_b32 v1, s35")
        self.bf16r("v1", "v1")
        self.a("v_add_f32 v1, 0x3727c5ac, v1")
        self.bf16r("v1", "v1")
        self.a("v_sqrt_f32 v1, v1\ns_nop 0")
        self.bf16r("v1", "v1")
        self.cm("v16 / v17 = this lane's two xn values, each in both halves; v11 = 512w + 32c + 16(g & 1)")
        self.a(f"""
        v_rcp_f32 v1, v1
        v_lshlrev_b32 v16, 16, v8
        v_and_b32 v17, 0xffff0000, v8
        v_sub_f32 v16, v16, v2
        v_sub_f32 v17, v17, v2
        v_cvt_pk_bf16_f32 v17, v16, v17
        v_lshlrev_b32 v16, 16, v17
        v_and_b32 v17, 0xffff0000, v17
        v_mul_f32 v16, v16, v1
        v_mul_f32 v17, v17, v1
        v_cvt_pk_bf16_f32 v16, v16, v16
        v_cvt_pk_bf16_f32 v17, v17, v17
        v_lshlrev_b32 v11, 5, v10
        v_and_b32 v1, 16, v0
        v_add_u32 v11, v11, v1
        s_lshl_b32 s6, s33, 9
        v_add_u32 v11, s6, v11
        v_add_u32 v3, {self.QBUF}, v11
        v_mov_b32 v19, 1
        """)
        self.cm("---- q partial over this wave's 128 rows, as the pieces land")
        for t in range(32):
            a = 20 + 4 * (t % 2)
            self.build_a(a, f"v{16+t%2}", t // 2)
            if t + NQ >= issued[0] and issued[0] < 32:
                more()
            elif issued[0] - t - 1 < NQ:
                self.a(f"s_waitcnt vmcnt({issued[0]-t-1})\ns_nop 0")
            else:
                self.a("s_nop 1")
            r = 32 + 4 * t
            cc = "0" if t == 0 else "v[28:31]"
            self.a(f"v_mfma_f32_16x16x32_bf16 v[28:31], v[{a}:{a+3}], v[{r}:{r+3}], {cc}")
        self.a(f"""
        v_mov_b32 v18, {self.CNT}
        s_nop 6
        ds_write_b128 v3, v[28:31]
        s_mov_b64 exec, 1
        ds_add_u32 v18, v19
        s_mov_b64 exec, -1
        """)
        self.srd(16, 44, 4 << 20, "wo")
        self.srd(20, 48, 512 * 3584, "w1")
        self.srd(24, 50, 1792 * 1024, "w2")
        self.srd(28, 56, WS_BYTES, "ws")
        self.cm("the other weights are read after the loader's L2 prefetch, one or two loads at a time")
        self.a(f"v_mov_b32 v3, {self.LANDED}")
        self.lds_wait("s6", str(4 * c["PF"] + 4), "v3", "v1", cached=False, sleep=16)
        self.cm("---- FFN slice f = s88 = 4(h & 7) + (h >> 3): hidden units 64f .. 64f + 63 (f < 28)")
        self.a("""
        v_mov_b64 v[28:29], 0
        v_mov_b64 v[30:31], 0
        s_and_b32 s88, s5, 7
        s_lshl_b32 s88, s88, 2
        s_lshr_b32 s6, s5, 3
        s_add_u32 s88, s88, s6
        s_cmp_ge_u32 s88, 28
        s_cbranch_scc1 L_ffn_done
        """)
        self.cm("w1 piece n -> v32 + 4n: lane (g, i, c'): row 128g + 8(n ^ 2b) + 2w + i, columns 64f + 8c'")
        self.a("""
        v_bfe_u32 v1, v0, 3, 1
        v_lshl_add_u32 v1, v9, 7, v1
        s_lshl_b32 s6, s33, 1
        v_add_u32 v1, s6, v1
        v_mul_u32_u24 v1, 3584, v1
        v_and_b32 v2, 7, v0
        v_lshl_add_u32 v1, v2, 4, v1
        s_lshl_b32 s6, s88, 7
        v_add_u32 v1, s6, v1
        """)
        for n in range(16):
            r = 32 + 4 * n
            self.a(f"s_xor_b32 s6, s90, {n}\ns_mulk_i32 s6, 28672\ns_waitcnt vmcnt(0)")
            self.a(f"buffer_load_dwordx4 v[{r}:{r+3}], v1, s[20:23], s6 offen")
        self.cm("w2 piece n -> v96 + 4n: lane (g, c): row 64f + 16g + (n ^ 2b), columns 128w + 8c")
        self.a("""
        v_lshlrev_b32 v1, 14, v9
        v_lshl_add_u32 v1, v10, 4, v1
        s_lshl_b32 s6, s88, 16
        s_lshl_b32 s35, s33, 8
        s_add_u32 s6, s6, s35
        v_add_u32 v1, s6, v1
        s_lshl_b32 s91, s90, 10
        """)
        for n in range(16):
            r = 96 + 4 * n
            if n % 2 == 0:
                self.a(f"s_xor_b32 s6, s91, {n*1024}")
            self.a(f"s_waitcnt vmcnt(0)\nbuffer_load_dwordx4 v[{r}:{r+3}], v1, s[24:27], s6 offen offset:{(n%2)*1024}")
        self.cm("xn w1: A rows 0-7 carry i = 0, rows 8-15 i = 1; only the blocks with matching i are kept")
        for n in range(16):
            a = 20 + 4 * (n % 2)
            self.a(f"v_mov_b32_dpp v1, v16 row_newbcast:{n} row_mask:0xf bank_mask:0x3")
            self.a(f"v_mov_b32_dpp v1, v17 row_newbcast:{n} row_mask:0xf bank_mask:0xc")
            for d in range(4):
                self.a(f"v_and_b32 v{a+d}, v1, v{12+d}")
            r = 32 + 4 * n
            self.a(f"s_nop 1\nv_mfma_f32_16x16x32_bf16 v[28:31], v[{a}:{a+3}], v[{r}:{r+3}], v[28:31]")
        self.a(f"""
        v_and_b32 v1, 7, v0
        v_lshlrev_b32 v1, 5, v1
        v_and_b32 v2, 16, v0
        v_add_u32 v1, v1, v2
        v_and_b32 v2, 8, v0
        v_lshl_add_u32 v1, v2, 5, v1
        s_lshl_b32 s6, s33, 9
        s_add_u32 s6, s6, {self.FBUF}
        v_add_u32 v1, s6, v1
        s_mov_b32 exec_lo, 0x00ff00ff
        s_mov_b32 exec_hi, 0xff00ff00
        ds_write_b128 v1, v[28:31]
        s_mov_b64 exec, 1
        ds_add_u32 v18, v19 offset:4
        s_mov_b64 exec, -1
        v_add_u32 v2, 4, v18
        """)
        self.lds_wait("s6", "4", "v2", "v1", cached=False, sleep=1)
        self.cm("lane l: hidden unit l ^ 2b = bf16(silu(bf16(sum of the 8 partials)))")
        self.a(f"v_xor_b32 v1, s90, v0\nv_lshlrev_b32 v1, 2, v1\nv_add_u32 v1, {self.FBUF}, v1")
        for k in range(4):
            self.a(f"ds_read2st64_b32 v[{20+2*k}:{21+2*k}], v1 offset0:{2*k} offset1:{2*k+1}")
        self.a("""
        s_waitcnt lgkmcnt(0)
        v_add_f32 v20, v20, v21
        v_add_f32 v22, v22, v23
        v_add_f32 v24, v24, v25
        v_add_f32 v26, v26, v27
        v_add_f32 v20, v20, v22
        v_add_f32 v24, v24, v26
        v_add_f32 v20, v20, v24
        """)
        self.bf16r("v1", "v20")
        self.a(f"""
        v_mul_f32 v2, {LOG2E | 0x80000000:#x}, v1
        v_exp_f32 v2, v2
        s_nop 0
        v_add_f32 v2, 1.0, v2
        v_rcp_f32 v2, v2
        s_nop 0
        v_mul_f32 v1, v1, v2
        v_cvt_pk_bf16_f32 v16, v1, v1
        s_waitcnt vmcnt(0)
        s_nop 0
        """)
        for n in range(16):
            a = 20 + 4 * (n % 2)
            self.build_a(a, "v16", n)
            r = 96 + 4 * n
            cc = "0" if n == 0 else "v[28:31]"
            self.a(f"s_nop 1\nv_mfma_f32_16x16x32_bf16 v[28:31], v[{a}:{a+3}], v[{r}:{r+3}], {cc}")
        self.a("s_nop 7\nL_ffn_done:")
        self.cm("the FFN partial seeds the accumulators v160 + 4e (column 128w + 8c + e) of the output projection")
        for i in range(0, 32, 2):
            self.a(f"v_mov_b64 v[{160+i}:{161+i}], 0")
        for e in range(8):
            self.a(f"v_mov_b32 v{160+4*e}, v{28+e%4}")
        self.cm("---- wo, transposed in registers into MFMA B fragments: v[32 + 64(s>>1) + 8e + 4(s&1) + jj],\n"
                "lane (g, c) = wo[128h + ((32s + 4g + jj + {0,16}) ^ X(b))][128w + 8c + e]")
        self.a("""
        s_lshl_b32 s6, s2, 11
        v_add_u32 v11, s6, v11
        v_lshlrev_b32 v1, 12, v9
        v_lshl_add_u32 v1, v10, 4, v1
        s_lshl_b32 s6, s5, 17
        s_lshl_b32 s35, s33, 8
        s_add_u32 s6, s6, s35
        v_add_u32 v1, s6, v1
        s_mov_b32 s86, 0x05040100
        s_mov_b32 s87, 0x07060302
        """)
        self.xrot("s91", 15, 11)

        def freg(s, e):
            return 32 + 64 * (s // 2) + 8 * e + 4 * (s % 2)

        for s in range(4):
            for jj in range(4):
                if jj % 2 == 0:
                    self.a(f"s_xor_b32 s6, s91, {(32*s+jj)*1024}\ns_add_u32 s35, s6, 16384")
                for r in range(2):
                    self.a(f"buffer_load_dwordx4 v[{20+4*r}:{23+4*r}], v1, s[16:19], {('s6','s35')[r]} offen offset:{(jj%2)*1024}")
                self.a("s_waitcnt vmcnt(0)")
                for d in range(4):
                    for r in range(2):
                        self.a(f"v_perm_b32 v{freg(s, 2*d+r)+jj}, v{24+d}, v{20+d}, s{86+r}")
        self.cm("---- o wo on the 2:4 MFMA (64 k per instruction): even A rows hold elements 0,1 of every four, odd\n"
                "rows elements 2,3 (v3 = positions), so an even plus an odd row of D is the full dense product")
        self.a(f"""
        v_and_b32 v1, 48, v0
        v_and_b32 v2, 1, v0
        v_cmp_eq_u32 vcc, 1, v2
        v_lshlrev_b32 v2, 4, v2
        v_lshl_add_u32 v1, v1, 1, v2
        v_add_u32 v1, {self.OBUF}, v1
        v_mov_b32 v2, 0x44444444
        v_mov_b32 v3, 0xeeeeeeee
        v_cndmask_b32 v3, v2, v3, vcc
        .p2align 3
        s_barrier
        s_barrier
        ds_read_b128 v[12:15], v1
        ds_read_b128 v[16:19], v1 offset:128
        """)

        def fin(e):
            d = 160 + 4 * e
            self.a(f"v_add_f32_dpp v{28+e%4}, v{d}, v{d+1} quad_perm:[0,1,2,3] row_mask:{1+e//4:#x} bank_mask:0xf")

        order = (0, 4, 1, 5, 2, 6, 3, 7)
        for k, e in enumerate(order):
            d = 160 + 4 * e
            for S in range(2):
                if k == 0:
                    self.a(f"s_waitcnt lgkmcnt({1-S})")
                r = freg(2 * S, e)
                self.a(f"v_smfmac_f32_16x16x64_bf16 v[{d}:{d+3}], v[{12+4*S}:{15+4*S}], v[{r}:{r+7}], v3")
            if k >= 4:
                fin(order[k - 4])
        self.cm("0xffffffff (a NaN) becomes 0xfffffffe; 8 wait states between an MFMA and the read of its result")
        self.a("v_min_u32 v28, -2, v28\nv_min_u32 v29, -2, v29")
        fin(2)
        fin(6)
        self.a("v_min_u32 v30, -2, v30")
        fin(3)
        self.a("s_mov_b32 exec_hi, 0")
        fin(7)
        self.a(f"""
        v_min_u32 v31, -2, v31
        buffer_store_dwordx4 v[28:31], v11, s[28:31], 0 offen {COH}
        s_waitcnt vmcnt(0)
        s_barrier
        s_endpgm
        """)

    def aux(self):
        c = self.c
        self.title("aux wave.  s4 = b")
        self.cm("mark this workgroup's record empty (workgroups 0..127 also zero one line of the control area),\n"
                "wait for the stores, count the workgroup as arrived")
        self.a("""
        L_aux:
        s_lshr_b32 s4, s2, 5
        s_lshl_b32 s6, s2, 11
        v_lshlrev_b32 v1, 4, v0
        v_mov_b64 v[20:21], -1
        v_mov_b64 v[22:23], -1
        s_lshl_b32 s33, s4, 5
        v_mov_b32 v18, s33
        v_mov_b32 v19, 1
        s_waitcnt lgkmcnt(0)
        """)
        self.srd(28, 56, WS_BYTES, "ws")
        self.srd(60, 54, 256, "debug")
        self.a(f"""
        buffer_store_dwordx4 v[20:23], v1, s[28:31], s6 offen {COH}
        buffer_store_dwordx4 v[20:23], v1, s[28:31], s6 offen offset:1024 {COH}
        s_cmp_ge_u32 s2, 128
        s_cbranch_scc1 L_no_pclear
        s_lshl_b32 s6, s2, 7
        s_add_u32 s6, s6, {WS_P:#x}
        v_mov_b64 v[24:25], 0
        v_mov_b64 v[26:27], 0
        s_mov_b64 exec, 0xff
        buffer_store_dwordx4 v[24:27], v1, s[28:31], s6 offen {COH}
        L_no_pclear:
        s_mov_b64 exec, 1
        s_waitcnt vmcnt(0)
        buffer_atomic_add v19, v18, s[60:63], 0 offen
        s_mov_b64 exec, -1
        """)
        self.cm("this workgroup finishes columns 16 s5 .. 16 s5 + 15, s5 = 4(h & 7) + (h >> 3)\n"
                "v8: lane (p = l >> 2, e = l & 3): columns 4e.. of that block in the record of producer p (and p + 16)\n"
                "v10: byte offset of x / out [b][16 s5 + 4e + (0,2,1,3)[l >> 4]]")
        self.a(f"""
        s_bfe_u32 s6, s2, 0x20003
        s_and_b32 s5, s2, 7
        s_lshl_b32 s5, s5, 2
        s_or_b32 s5, s5, s6
        v_lshrrev_b32 v1, 2, v0
        v_lshlrev_b32 v1, 11, v1
        v_and_b32 v2, 3, v0
        v_lshl_add_u32 v1, v2, 4, v1
        s_lshl_b32 s6, s4, 16
        s_lshl_b32 s35, s5, 6
        s_add_u32 s6, s6, s35
        v_add_u32 v8, s6, v1
        v_lshlrev_b32 v2, 3, v2
        v_bfe_u32 v1, v0, 4, 1
        v_lshl_add_u32 v2, v1, 2, v2
        v_bfe_u32 v1, v0, 5, 1
        v_lshl_add_u32 v2, v1, 1, v2
        s_lshl_b32 s6, s4, 10
        s_lshl_b32 s35, s5, 5
        s_add_u32 s6, s6, s35
        v_add_u32 v10, s6, v2
        v_mov_b32 v16, {self.LANDED}
        s_lshr_b32 s33, s2, 3
        s_mul_i32 s27, s33, {c['PERIOD']}
        s_lshr_b32 s27, s27, 5
        s_add_u32 s27, s27, {c['CSTART'] - c['PERIOD']}
        v_and_b32 v15, 7, v0
        v_lshlrev_b32 v15, 5, v15
        """)
        self.srd(8, 36, 8192, "x")
        self.srd(12, 52, 8192, "out")
        self.lds_wait("s26", "s27", "v16", "v1", cached=False, sleep=8)
        self.cm("all 256 workgroups arrived?  if not (s58 = 0): no depth control, and wait for this batch later")
        self.a(f"""
        buffer_load_ushort v11, v10, s[8:11], 0 offen
        buffer_load_dword v1, v15, s[60:63], 0 offen {COH}
        s_mov_b32 s58, 0
        s_waitcnt vmcnt(0)
        v_cmp_gt_u32 vcc, 32, v1
        v_lshlrev_b32 v11, 16, v11
        s_cbranch_vccnz L_ctrl_done
        s_mov_b32 s58, 1
        """)
        base = c["FB"] + 0.5 + c["K"] * c["PERIOD"] / 2
        nx = (c["XEND"] - c["XSTART"]) // c["XP"]
        assert nx < 32 and c["PERIOD"] & (c["PERIOD"] - 1) == 0
        dg = int((c["G"] - c["GEND"]) * 256 / 7 * 256 / max(nx, 1))
        self.cm("---- depth control.  group = (die, workgroup & 7), slot = workgroup >> 3; s34 = the group's line.\n"
                "Plain loads / stores: the line stays in the die's L2.  word = quarters landed | group offset << 16")
        self.a(f"""
        s_getreg_b32 s6, hwreg(HW_REG_XCC_ID)
        s_and_b32 s34, s6, 7
        s_lshl_b32 s34, s34, 3
        s_and_b32 s35, s2, 7
        s_or_b32 s34, s34, s35
        s_lshl_b32 s34, s34, 7
        s_add_u32 s34, s34, {WS_P:#x}
        s_mov_b32 s46, {f2u(base + c['PAR'] / 2):#x}
        s_and_b32 s6, s6, 1
        s_cselect_b32 s46, {f2u(base - c['PAR'] / 2):#x}, s46
        v_and_b32 v14, 31, v0
        v_lshlrev_b32 v14, 2, v14
        s_lshl_b32 s33, s33, 2
        v_mov_b32 v13, s33
        v_lshlrev_b32 v17, 2, v0
        v_add_u32 v17, {self.LEVEL}, v17
        v_mov_b32 v12, {WS_X:#x}
        s_mov_b32 s47, 0
        s_mov_b32 s48, 0
        s_mov_b32 s43, 0
        s_mov_b32 s49, {c['XSTART']}
        s_mov_b32 s44, {int(c['G'] * 256 / 7 * 256)}
        s_cmp_eq_u32 s33, 0
        s_cselect_b32 s49, s49, 0x7fff
        L_ctrl:
        s_add_u32 s27, s27, {c['PERIOD']}
        """)
        self.lds_wait("s26", "s27", "v16", "v1", cached=False, sleep=2)
        self.cm("never fall behind the stream: skip missed sampling points, stop near the end")
        self.a(f"""
        s_cmp_ge_i32 s26, {c['CEND']}
        s_cbranch_scc1 L_ctrl_done
        s_sub_u32 s6, s26, s27
        s_and_b32 s6, s6, {-c['PERIOD']}
        s_add_u32 s27, s27, s6
        buffer_load_dword v2, v14, s[28:31], s34 offen
        s_mov_b64 exec, 1
        s_cmp_lt_i32 s27, s49
        s_cbranch_scc1 L_ctrl_post
        """)
        self.cm("slot 0 at a checkpoint: rank among the eight groups -> offset in 1/256 levels")
        self.a(f"""
        v_mov_b32 v3, 2
        buffer_atomic_add v3, v12, s[28:31], 0 offen sc0
        v_add_u32 v12, 0x100, v12
        s_add_u32 s49, s49, {c['XP']}
        s_cmp_gt_i32 s49, {c['XEND']}
        s_cselect_b32 s49, 0x7fff, s49
        s_waitcnt vmcnt(0)
        v_readfirstlane_b32 s6, v3
        s_sub_i32 s6, s6, 7
        s_mul_i32 s35, s6, {int(c['GI'] * 256 / 7 * 256)}
        s_mul_i32 s6, s6, s44
        s_add_i32 s43, s43, s35
        s_add_i32 s6, s6, s43
        s_ashr_i32 s6, s6, 8
        s_lshl_b32 s48, s6, 16
        s_sub_i32 s44, s44, {dg}
        L_ctrl_post:
        v_or_b32 v3, s48, v1
        buffer_store_dword v3, v13, s[28:31], s34 offen
        s_mov_b64 exec, -1
        v_cvt_f32_u32 v6, v1
        s_waitcnt vmcnt(1)
        v_readfirstlane_b32 s45, v2
        v_and_b32 v2, 0xffff, v2
        v_cmp_ne_u32 vcc, 0, v2
        s_bcnt1_i32_b64 s6, vcc
        s_ashr_i32 s45, s45, 16
        """)
        self.wave_red("v_add_u32", "v2")
        self.cm("level = base + K * (mean of the posted values - own) + offset")
        self.a(f"""
        v_cvt_f32_u32 v4, s6
        v_readlane_b32 s35, v2, 63
        v_rcp_f32 v4, v4
        v_mov_b32 v7, s46
        s_cmp_lt_i32 s27, {c['FBXEND']}
        s_cselect_b32 s6, {int(c['FBX']*256)}, 0
        s_add_i32 s45, s45, s6
        v_cvt_f32_u32 v5, s35
        v_fma_f32 v6, v5, v4, -v6
        v_cvt_f32_i32 v5, s45
        v_fmac_f32 v7, {f2u(c['K']):#x}, v6
        v_fmac_f32 v7, 0x3b800000, v5
        v_max_f32 v7, 0, v7
        v_cvt_u32_f32 v7, v7
        v_min_u32 v7, {len(c['LEVELS']) - 1}, v7
        s_cmp_eq_u32 s47, 0
        s_mov_b32 s47, 1
        s_cbranch_scc1 L_ctrl
        ds_write_b32 v17, v7
        s_cmp_lt_i32 s27, {c['CEND'] - c['PERIOD']}
        s_cbranch_scc1 L_ctrl
        L_ctrl_done:
        s_mov_b32 s44, 0x8000
        s_cmp_eq_u32 s58, 0
        """)
        self.cm("barriers 1..3: stream landed, o in LDS, own record stored")
        self.a("""
        .p2align 3
        s_barrier
        s_barrier
        s_barrier
        s_cbranch_scc1 L_wait_batch
        """)
        self.cm("---- gather: lanes whose eight words have all been written drop out")
        self.a(f"""
        L_gather:
        buffer_load_dwordx4 v[20:23], v8, s[28:31], 0 offen {COH}
        buffer_load_dwordx4 v[24:27], v8, s[28:31], s44 offen {COH}
        """)
        self.budget()
        self.a("""
        s_waitcnt vmcnt(0)
        v_max3_u32 v1, v20, v21, v22
        v_max3_u32 v2, v23, v24, v25
        v_max3_u32 v1, v1, v26, v27
        v_add_f32 v28, v20, v24
        v_max_u32 v1, v1, v2
        v_add_f32 v29, v21, v25
        v_cmp_eq_u32 vcc, -1, v1
        v_add_f32 v30, v22, v26
        v_add_f32 v31, v23, v27
        s_and_b64 exec, exec, vcc
        s_cbranch_execnz L_gather
        s_mov_b64 exec, -1
        """)
        self.cm("sum over the producers (fixed order), add x, round, store")
        self.a(f"""
        v_permlane32_swap_b32 v28, v29
        v_permlane32_swap_b32 v30, v31
        v_add_f32 v28, v28, v29
        v_add_f32 v30, v30, v31
        s_nop 1
        v_permlane16_swap_b32 v28, v30
        v_add_f32 v28, v28, v30
        s_nop 1
        v_add_f32_dpp v28, v28, v28 row_ror:8 {DPPALL}
        v_add_f32 v29, v11, v28
        s_nop 0
        v_add_f32_dpp v29, v28, v29 row_ror:4 {DPPALL}
        v_cvt_pk_bf16_f32 v29, v29, v29
        s_mov_b32 exec_lo, 0x000f000f
        s_mov_b32 exec_hi, 0x000f000f
        buffer_store_short v29, v10, s[12:15], 0 offen
        """)
        if c["lite"]:
            self.a("""
            s_waitcnt vmcnt(0)
            s_memrealtime s[70:71]
            s_lshl_b32 s96, s2, 10
            s_add_u32 s96, s96, 0x1000300
            s_mov_b64 exec, -1
            v_mov_b32 v1, s96
            s_sleep 127
            s_sleep 127
            s_sleep 127
            s_waitcnt lgkmcnt(0)
            v_mov_b32 v2, s64
            v_mov_b32 v3, s65
            v_mov_b32 v4, s70
            v_mov_b32 v5, s71
            global_store_dwordx2 v1, v[2:3], s[56:57]
            global_store_dwordx2 v1, v[4:5], s[56:57] offset:24
            """)
        self.a("L_end:\ns_endpgm")
        self.cm("rare: some workgroup had not arrived yet; wait until the 32 records of this batch are marked")
        self.a("L_wait_batch:")
        self.budget()
        self.a(f"""
        buffer_load_dword v1, v18, s[60:63], 0 offen {COH}
        s_waitcnt vmcnt(0)
        v_cmp_gt_u32 vcc, 32, v1
        s_cbranch_vccz L_gather
        s_sleep 32
        s_branch L_wait_batch
        """)

    def body(self):
        n = self.c["name"]
        self.L.append("; keeps the start-up code clear of a 4 KiB boundary\n.p2align 12")
        self.L.append(f".globl {n}\n.p2align 8\n.type {n},@function\n{n}:")
        self.entry()
        self.loader()
        self.weights()
        self.consumer()
        self.aux()
        self.L += self.loader_cold
        return "\n".join(self.L)

    def kd(self):
        n = self.c["name"]
        return f""".p2align 6
.amdhsa_kernel {n}
  .amdhsa_next_free_vgpr 256
  .amdhsa_next_free_sgpr 100
  .amdhsa_accum_offset 256
  .amdhsa_group_segment_fixed_size 0
  .amdhsa_kernarg_size 88
  .amdhsa_user_sgpr_count 2
  .amdhsa_user_sgpr_kernarg_segment_ptr 1
  .amdhsa_system_sgpr_workgroup_id_x 1
  .amdhsa_float_denorm_mode_32 3
.end_amdhsa_kernel"""


HEADER = open("cdna_kernels/" + NAME + ".s.ref").read().split("; Override launch geometry")[0]


def single(path, **kw):
    g = Gen(**kw)
    s = HEADER
    s += f"; @launch grid=(256,1,1) block=({64*NWAVES},1,1) lds={g.LDS_BYTES}\n"
    s += DOC
    s += '.amdgcn_target "amdgcn-amd-amdhsa--gfx950"\n.text\n' + g.body() + '\n.section .rodata,"a"\n' + g.kd() + "\n"
    open(path, "w").write(s)


if __name__ == "__main__":
    out = sys.argv[1] if len(sys.argv) > 1 else "cdna_kernels/" + NAME + ".s"
    kw = {}
    for x in sys.argv[2:]:
        k, v = x.split("=", 1)
        try:
            v = eval(v)
        except Exception:
            pass
        kw[k] = v
    single(out, **kw)
```

```python
import struct
import sys

NAME = "parallel_sum__mha_block_cached__dense_activation_silu__decode"

DEFAULT = dict(
    LEVELS=(16, 17, 18, 19, 20, 22, 24, 27),
    BASE=3,
    perm="0135267894",
    CSTART=64,
    CEND=492,
    PERIOD=8,
    K=0.45,
    FB=3.85,
    FBX=0.4, FBXEND=290,
    PAR=0.4,
    XSTART=80, XP=32, XEND=470,
    G=1.5,
    GEND=1.0,
    GI=0.07,
    NSLOT=9,
    NQ=3,
    PF=12,
    PFD=26,
    pfpol='', promote=0, prpol='sc1',
    KEND=0.0, KSW=400,
    lay=1, gld=None, gst=None, NS=1, GAP=0, ack=1,
    lite=False,
    name=NAME + "_kernel",
)

WS_P = 0x80000
WS_X = 0x82000
WS_BYTES = 0x84000
LOG2E = 0x3FB8AA3B
SCALE = 0x3DB504F3
DPPALL = "row_mask:0xf bank_mask:0xf"
COH = "sc0 sc1"
NWAVES = 7

DOC = """\
;
; out = x + softmax(q K^T / sqrt(128)) V wo + silu(xn w1) w2,   xn = layernorm(x),  q = xn wq
;
;   waves 2-5  weights  : layernorm, q = xn wq[:, h], one 64-unit slice of the FFN, o wo[h, :]
;
"""


def f2u(x):
    return struct.unpack('<I', struct.pack('<f', x))[0]


class Gen:
    def __init__(self, **kw):
        self.c = dict(DEFAULT)
        self.c.update(kw)
        self.L = []
        self.uid = 0
        self.RINGEND = self.c["NSLOT"] * 0x4000
        self.SBUF = self.RINGEND
        m = self.SBUF + 0x2100
        self.LANDED = m
        self.CONSUMED = m + 0x100
        self.LEVEL = m + 0x200
        self.CNT = m + 0x300
        self.QBUF = m + 0x400
        self.QPK = m + 0xC00
        self.OBUF = m + 0xD00
        self.FBUF = m + 0xE00
        self.LDS_BYTES = m + 0x1600
        assert self.LDS_BYTES <= 160 * 1024

    def a(self, s):
        for line in s.strip("\n").split("\n"):
            line = line.strip()
            if not line:
                continue
            self.L.append(line if line.endswith(":") and not line.startswith(";") else "    " + line)

    def cm(self, s):
        for line in s.strip("\n").split("\n"):
            self.L.append("    ; " + line.strip())

    def title(self, s):
        self.L.append("; " + "-" * 100)
        for line in s.strip("\n").split("\n"):
            self.L.append("; " + line.strip())
        self.L.append("; " + "-" * 100)

    def new(self, n):
        self.uid += 1
        return f"L_{n}{self.uid}"

    def budget(self):
        self.a("s_sub_u32 s7, s7, 1\ns_cbranch_scc1 L_end")

    def bf16r(self, d, s):
        self.a(f"v_cvt_pk_bf16_f32 {d}, {s}, {s}\nv_and_b32 {d}, 0xffff0000, {d}")

    def wave_red(self, op, v):
        for sh in (8, 4, 2, 1):
            self.a(f"s_nop 1\n{op}_dpp {v}, {v}, {v} row_ror:{sh} {DPPALL}")
        self.a(f"s_nop 1\n{op}_dpp {v}, {v}, {v} row_bcast:15 row_mask:0xa bank_mask:0xf")
        self.a(f"s_nop 1\n{op}_dpp {v}, {v}, {v} row_bcast:31 row_mask:0xc bank_mask:0xf")

    def srd(self, r, p, size, what):
        self.a(f"s_mov_b32 s{r}, s{p}    ; SRD {what}\ns_and_b32 s{r+1}, s{p+1}, 0xffff\n"
               f"s_mov_b32 s{r+2}, {size:#x}\ns_mov_b32 s{r+3}, 0x20000")

    def build_a(self, dst, p, n):
        for d in range(4):
            self.a(f"v_and_b32_dpp v{dst+d}, {p}, v{12+d} row_newbcast:{n} {DPPALL}")

    def lds_wait(self, sreg, need, vaddr, vt, cached=True, sleep=0):
        go, poll = self.new("go"), self.new("poll")
        if cached:
            self.a(f"s_cmp_ge_i32 {sreg}, {need}\ns_cbranch_scc1 {go}")
        self.a(f"{poll}:")
        self.budget()
        if sleep:
            self.a(f"s_sleep {sleep}")
        self.a(f"""
        ds_read_b32 {vt}, {vaddr}
        s_waitcnt lgkmcnt(0)
        v_readfirstlane_b32 {sreg}, {vt}
        s_cmp_ge_i32 {sreg}, {need}
        s_cbranch_scc0 {poll}
        {go}:
        """)

    def xrot(self, d, sh_lo, sh_hi):
        self.a(f"""
        s_bfe_u32 {d}, s2, 0x20005
        s_lshl_b32 {d}, {d}, {sh_lo}
        s_lshr_b32 s35, s2, 7
        s_lshl_b32 s35, s35, {sh_hi}
        s_or_b32 {d}, {d}, s35
        """)

    def next_slot(self, s):
        self.a(f"s_add_u32 {s}, {s}, 0x4000\ns_cmp_eq_u32 {s}, {self.RINGEND:#x}\ns_cselect_b32 {s}, 0, {s}")

    def entry(self):
        c = self.c
        self.cm("s2 = workgroup = 32 b + h, s3 = wave, v0 = lane, s7 = spin budget\n"
                "s[36:51] = x K V wq wo (B_x) w1 w2, s[52:53] = out, s[54:55] = debug, s[56:57] = ws")
        self.a(f"""
        v_lshrrev_b32 v1, 6, v0
        s_cmp_ge_u32 s2, 256
        s_cbranch_scc1 L_end
        v_readfirstlane_b32 s3, v1
        v_and_b32 v0, 63, v0
        s_mov_b32 s7, 0x100000
        s_cmp_eq_u32 s3, 1
        s_cbranch_scc0 L_args
        v_lshlrev_b32 v2, 2, v0
        v_add_u32 v2, {self.LANDED}, v2
        v_mov_b32 v4, 0
        v_mov_b32 v5, {c['BASE']}
        ds_write2st64_b32 v2, v4, v4 offset0:0 offset1:1
        ds_write2st64_b32 v2, v5, v4 offset0:2 offset1:3
        s_waitcnt lgkmcnt(0)
        s_barrier
        s_branch L_consumer
        L_args:
        s_load_dwordx16 s[36:51], s[0:1], 0
        s_load_dwordx4 s[52:55], s[0:1], 64
        s_load_dwordx2 s[56:57], s[0:1], 80
        """)
        if c["lite"]:
            self.a("s_memrealtime s[64:65]")
        self.a("s_barrier\ns_cmp_lg_u32 s3, 0\ns_cbranch_scc1 L_roles")

    def loader(self):
        c = self.c
        LV = c["LEVELS"]
        perm = [int(x) + 10 for x in c["perm"]]
        assert perm[:2] == [10, 11] and sorted(perm) == list(range(10, 20))
        self.title("""loader.  chunk = 16 pieces of 1 KiB (64 keys) = one ring slot; quarter = 4 pieces, contiguous in memory
        s24 = source offset of the chunk, s25 = ring slot, s26 = chunks consumed (cached), s27 = chunks that must be
        consumed, s28 = 4 * chunk, s29 = s28 of the next event, s31 = level.   v16+p = lane offsets of piece p:
        K: 16-byte block c of a row of piece p is stored at block c ^ p (conflict-free MFMA fragment reads)""")
        self.a(f"""
        s_setprio 3
        v_lshlrev_b32 v16, 4, v0
        v_lshlrev_b32 v2, 2, v0
        v_add_u32 v2, {self.LANDED}, v2
        v_xor_b32 v20, 64, v16
        v_xor_b32 v24, 0x80, v16
        v_xor_b32 v28, 64, v24
        """)
        for p in range(16):
            if p % 4:
                self.a(f"v_xor_b32 v{16+p}, {(p%4)*16}, v{16+p//4*4}")
        self.a(f"""
        v_mov_b32 v3, {self.CONSUMED}
        s_lshl_b32 s6, s2, 20
        s_mov_b32 s18, 0x100000
        s_mov_b32 s19, 0x20000
        s_mov_b64 s[24:25], 0
        s_mov_b32 s26, 0
        s_mov_b32 s27, {1 - c['NSLOT']}
        s_mov_b32 s28, 0
        s_mov_b32 s29, {4 * c['PF']}
        s_waitcnt lgkmcnt(0)
        s_add_u32 s16, s38, s6
        s_addc_u32 s17, s39, 0
        s_and_b32 s17, s17, 0xffff
        """)

        def body(i):
            D = LV[i]
            self.cm(f"one chunk with at most {D} pieces in flight; landed quarters are posted as the waits cover them")
            self.a(f".p2align 3\nL_ld_d{i}:")
            for p in range(16):
                if p % 4 == 0:
                    self.a(f"s_add_u32 m0, s25, {(p//4)*4096}")
                    self.a(f"s_xor_b32 s23, s24, {(((p>>2)&1)<<perm[2]) | (((p>>3)&1)<<perm[3])}")
                self.a(f"s_waitcnt vmcnt({D-1})")
                self.a(f"buffer_load_dwordx4 v{16+p}, s[16:19], s23 offen offset:{(p%4)*1024} nt lds")
                if (p - D + 1) % 4 == 0:
                    self.a(f"s_add_i32 s30, s28, {(p-D+1)//4}\nv_mov_b32 v4, s30\nds_write_b32 v2, v4")
                if p == 8:
                    self.a("ds_read2st64_b32 v[6:7], v3 offset0:0 offset1:1")
                if p == 12:
                    self.a("s_waitcnt lgkmcnt(0)\nv_readfirstlane_b32 s26, v6\nv_readfirstlane_b32 s31, v7")
            self.a("s_branch L_ld_top")

        body(c["BASE"])
        hot, self.L = self.L, []
        self.title("loader: per-chunk bookkeeping and events")
        self.a("L_ld_top:")
        self.next_slot("s25")
        self.a("""
        s_add_i32 s27, s27, 1
        s_add_i32 s28, s28, 4
        s_cmp_eq_u32 s28, s29
        s_cbranch_scc1 L_ld_event
        L_ld_go:
        """)
        self.cm("source offset: the chunk number's bits are scattered over the address (DRAM page locality);\n"
                "K and V are walked in the same order")
        runs = []
        for k in range(6):
            sh = perm[4 + k] - (2 + k)
            if runs and runs[-1][0] == sh:
                runs[-1][1] |= 1 << (2 + k)
            else:
                runs.append([sh, 1 << (2 + k)])
        for i, (sh, mask) in enumerate(runs):
            d = "s24" if i == 0 else "s22"
            self.a(f"s_and_b32 {d}, s28, {mask:#x}\ns_lshl_b32 {d}, {d}, {sh}")
            if i:
                self.a("s_or_b32 s24, s24, s22")
        self.cm("the slot must be free")
        self.lds_wait("s26", "s27", "v3", "v5")

        def dispatch(lo, hi):
            if lo == hi:
                self.a(f"s_branch L_ld_d{lo}")
                return
            mid = (lo + hi + 1) // 2
            if mid == hi:
                self.a(f"s_cmp_ge_i32 s31, {mid}\ns_cbranch_scc1 L_ld_d{hi}")
                dispatch(lo, mid - 1)
            else:
                up = self.new("ld_up")
                self.a(f"s_cmp_ge_i32 s31, {mid}\ns_cbranch_scc1 {up}")
                dispatch(lo, mid - 1)
                self.a(f"{up}:")
                dispatch(mid, hi)

        dispatch(0, len(LV) - 1)
        self.a(f"L_ld_event:\ns_cmp_lg_u32 s28, {4 * c['PF']}\ns_cbranch_scc1 L_ld_ev_v")
        self.pf_code()
        self.a("s_mov_b32 s29, 256\ns_branch L_ld_go\nL_ld_ev_v:\ns_cmp_lg_u32 s28, 256\ns_cbranch_scc1 L_ld_ev_end")
        self.cm("switch to V: 32-byte block t of row r is stored at block t ^ (r & 7) (transposing reads)")
        self.a("v_lshrrev_b32 v17, 4, v0\nv_lshlrev_b32 v17, 5, v17\nv_xor_b32 v16, v16, v17\nv_xor_b32 v17, 0x80, v16")
        for p in range(2, 16):
            self.a(f"v_mov_b32 v{16+p}, v{16+p%2}")
        self.a("""
        s_add_u32 s16, s40, s6
        s_addc_u32 s17, s41, 0
        s_and_b32 s17, s17, 0xffff
        s_mov_b32 s29, 512
        s_branch L_ld_go
        L_ld_ev_end:
        """)
        self.cm("drain; the last quarter is announced with barrier 1")
        for r in range((max(LV) - 1) // 4 * 4, 0, -4):
            self.a(f"v_mov_b32 v4, {(2048-r)//4}\ns_waitcnt vmcnt({r})\nds_write_b32 v2, v4")
        self.a("s_waitcnt vmcnt(0)\ns_barrier\ns_endpgm")
        self.loader_top, self.L = self.L, []
        self.title("loader: the other depths")
        for i in range(len(LV)):
            if i != c["BASE"]:
                body(i)
        self.loader_bodies, self.L = self.L, hot

    def pf_code(self):
        D = self.c["PFD"]
        self.cm("L2 prefetch while the ring is full: every byte of wo, w2 and w1 is fetched from memory once, by a\n"
                "workgroup that normally shares an L2 with the ones that use it (16 + 8 + 8 KiB each, data dropped)")

        def load(srd, voff, imm):
            self.a(f"s_waitcnt vmcnt({D-1})\nbuffer_load_dwordx4 v[32:35], {voff}, s[{srd}:{srd+3}], s34 offen offset:{imm} {self.c['pfpol']}".rstrip())
            if self.c["promote"] == 1:
                self.a(f"s_mov_b64 exec, s[20:21]\nbuffer_load_dword v36, {voff}, s[{srd}:{srd+3}], s34 offen offset:{imm} {self.c['prpol']}\ns_mov_b64 exec, -1")

        if self.c["promote"]:
            self.a("s_mov_b32 s20, 0x01010101\ns_mov_b32 s21, 0x01010101")
        self.srd(8, 44, 4 << 20, "wo")
        self.srd(12, 50, 1792 * 1024, "w2")
        self.srd(60, 48, 512 * 3584, "w1")
        self.a("""
        v_lshlrev_b32 v8, 4, v0
        s_bfe_u32 s4, s2, 0x10005
        s_lshl_b32 s4, s4, 12
        s_bfe_u32 s5, s2, 0x10006
        s_lshl_b32 s5, s5, 14
        s_or_b32 s4, s4, s5
        s_lshr_b32 s5, s2, 7
        s_lshl_b32 s33, s5, 16
        s_or_b32 s33, s33, s4
        s_and_b32 s34, s2, 31
        s_lshl_b32 s34, s34, 17
        s_or_b32 s33, s33, s34
        """)
        for q in range(4):
            self.a(f"s_or_b32 s34, s33, {((q & 1) << 13) | ((q >> 1) << 15)}")
            for k in range(4):
                load(8, "v8", 1024 * k)
        self.a("""
        s_and_b32 s35, s2, 7
        s_cmp_eq_u32 s35, 7
        s_cbranch_scc1 L_pf_done
        s_lshl_b32 s5, s5, 15
        s_or_b32 s4, s4, s5
        s_lshl_b32 s5, s35, 18
        s_or_b32 s4, s4, s5
        s_bfe_u32 s5, s2, 0x20003
        s_lshl_b32 s5, s5, 16
        s_or_b32 s4, s4, s5
        """)
        for q in range(2):
            self.a(f"s_or_b32 s34, s4, {q << 13}")
            for k in range(4):
                load(12, "v8", 1024 * k)
        self.a("""
        v_lshrrev_b32 v9, 5, v0
        v_mul_u32_u24 v9, 3072, v9
        v_add_u32 v9, v9, v8
        s_lshr_b32 s34, s2, 3
        s_mul_i32 s34, s34, 57344
        s_lshl_b32 s35, s35, 9
        s_add_u32 s34, s34, s35
        """)
        for k in range(8):
            load(60, "v9", 0)
            if k < 7:
                self.a("s_add_u32 s34, s34, 7168")
        self.a("L_pf_done:")

    def consumer(self):
        c = self.c
        self.title("""consumer.  s25 = ring slot, s26 = quarters landed (cached), s27 = quarters needed, v123 = chunks consumed
        v112 / v113 = running max / sum of this lane's scores, v120 = this lane's score word in LDS""")
        self.a("L_consumer:\nv_add_u32 v122, 0x100, v2\ns_setprio 2")
        self.cm("K fragment addresses v4..v7: lane (kg, n), k-step s: n*1024 + ((4s + kg) ^ n) * 16")
        self.a("v_and_b32 v1, 15, v0\nv_lshrrev_b32 v2, 4, v0\nv_xor_b32 v2, v2, v1\nv_lshlrev_b32 v2, 4, v2\nv_lshl_add_u32 v4, v1, 10, v2")
        for s in range(1, 4):
            self.a(f"v_xor_b32 v{4+s}, {s*64}, v4")
        self.cm("lane (g, n) gets the score of key 4n + g; it is stored where the P V A fragments want it")
        self.a(f"""
        v_lshrrev_b32 v120, 4, v0
        v_bfe_u32 v1, v0, 2, 1
        v_lshl_add_u32 v120, v1, 2, v120
        v_and_b32 v1, 3, v0
        v_lshl_add_u32 v120, v1, 3, v120
        v_bfe_u32 v1, v0, 3, 1
        v_lshl_add_u32 v120, v1, 5, v120
        v_lshlrev_b32 v120, 1, v120
        v_add_u32 v120, {self.SBUF + 0x100}, v120
        v_mov_b32 v121, {self.LANDED}
        v_mov_b32 v112, 0xff7fffff
        v_mov_b32 v113, 0
        v_mov_b32 v123, 0
        v_mov_b32 v125, {self.CNT}
        s_mov_b32 s26, 0
        s_mov_b32 s25, 0x8000
        s_mov_b32 s27, 12
        s_mov_b32 s30, {LOG2E:#x}
        v_lshlrev_b32 v8, 3, v0
        v_add_u32 v8, {self.QBUF}, v8
        v_lshlrev_b32 v9, 2, v0
        v_add_u32 v9, {self.QPK}, v9
        v_and_b32 v10, 48, v0
        v_add_u32 v10, {self.QPK}, v10
        """)
        self.cm("while q is being computed, chunks 0..2 move into registers so that their ring slots are free again")
        PB = (128, 192, 48)
        for k in range(3):
            self.lds_wait("s26", str(4 * k + 4), "v121", "v1", sleep=1)
            for jb in range(4):
                for s in range(4):
                    r = PB[k] + (jb * 4 + s) * 4
                    self.a(f"ds_read_b128 v[{r}:{r+3}], v{4+s} offset:{k*0x4000 + jb*256}")
            self.a("v_add_u32 v123, 1, v123\ns_waitcnt lgkmcnt(0)\nds_write_b32 v122, v123")
        self.cm("q: add the four partial sums, round to bf16, read back as MFMA A fragments v16..v31 (all rows equal)")
        self.lds_wait("s29", "4", "v125", "v1", cached=False, sleep=1)
        for w in range(4):
            self.a(f"ds_read_b64 v[{32+2*w}:{33+2*w}], v8 offset:{w*512}")
        self.a("""
        s_waitcnt lgkmcnt(0)
        v_add_f32 v32, v32, v34
        v_add_f32 v33, v33, v35
        v_add_f32 v36, v36, v38
        v_add_f32 v37, v37, v39
        v_add_f32 v32, v32, v36
        v_add_f32 v33, v33, v37
        v_cvt_pk_bf16_f32 v32, v32, v33
        ds_write_b32 v9, v32
        """)
        for s in range(4):
            self.a(f"ds_read_b128 v[{16+4*s}:{19+4*s}], v10 offset:{s*64}")
        self.cm("chunk 2 (already in v48..v111) goes first, chunks 0 and 1 after chunk 63")
        self.a("s_waitcnt lgkmcnt(0)\ns_branch L_k_mfma")

        self.cm("---- K phase, one chunk per trip")
        self.a(".p2align 3\nL_k_loop:")
        for s in range(4):
            self.a(f"v_add_u32 v{8+s}, s25, v{4+s}")
        self.lds_wait("s26", "s27", "v121", "v1")
        for jb in range(4):
            for s in range(4):
                r = 48 + (jb * 4 + s) * 4
                self.a(f"ds_read_b128 v[{r}:{r+3}], v{8+s} offset:{jb*256}")
        self.a("v_add_u32 v123, 1, v123\nL_k_mfma:")
        for jb in range(4):
            self.a(f"s_waitcnt lgkmcnt({12-4*jb})")
            if jb == 3:
                self.a("ds_write_b32 v122, v123")
            d = 32 + 4 * jb
            for s in range(4):
                r = 48 + (jb * 4 + s) * 4
                cc = "0" if s == 0 else f"v[{d}:{d+3}]"
                self.a(f"v_mfma_f32_16x16x32_bf16 v[{d}:{d+3}], v[{16+4*s}:{19+4*s}], v[{r}:{r+3}], {cc}")
        self.next_slot("s25")
        self.a("s_add_i32 s27, s27, 4\ns_nop 3")
        for jb in range(1, 4):
            self.a(f"v_mov_b32_dpp v32, v{32+4*jb} quad_perm:[0,1,2,3] row_mask:{1<<jb:#x} bank_mask:0xf")
        self.cm("score = bf16(bf16(q.k) * 128^-0.5); running max and sum of exp")
        self.bf16r("v32", "v32")
        self.a(f"v_mul_f32 v32, {SCALE:#x}, v32")
        self.bf16r("v32", "v32")
        self.a("""
        ds_write_b16_d16_hi v120, v32
        v_max_f32 v114, v112, v32
        v_sub_f32 v115, v112, v114
        v_sub_f32 v116, v32, v114
        v_mul_f32 v115, s30, v115
        v_mul_f32 v116, s30, v116
        v_exp_f32 v115, v115
        v_exp_f32 v116, v116
        v_mov_b32 v112, v114
        v_add_u32 v120, 0x80, v120
        v_fma_f32 v113, v113, v115, v116
        s_cmp_le_i32 s27, 256
        s_cbranch_scc1 L_k_loop
        """)
        for k in range(2):
            self.a(f"s_cmp_lg_u32 s27, {260+4*k}\ns_cbranch_scc1 L_k_parked{k}")
            if k == 0:
                self.a("v_subrev_u32 v120, 0x2000, v120")
            for i in range(0, 64, 2):
                self.a(f"v_mov_b64 v[{48+i}:{49+i}], v[{PB[k]+i}:{PB[k]+i+1}]")
            self.a(f"s_branch L_k_mfma\nL_k_parked{k}:")
        self.a(f"s_mov_b32 s25, {(64 % c['NSLOT'])*0x4000}")
        self.cm("---- softmax statistics over the 4096 keys: s31 = max, s32 = 1 / sum of exp(score - max)")
        self.a("v_subrev_u32 v120, 0x100, v120\nds_read_u16 v117, v120\nv_mov_b32 v114, v112")
        self.wave_red("v_max_f32", "v114")
        self.a("""
        s_nop 0
        v_readlane_b32 s31, v114, 63
        s_nop 1
        v_subrev_f32 v115, s31, v112
        v_mul_f32 v115, s30, v115
        v_exp_f32 v115, v115
        s_nop 0
        v_mul_f32 v113, v113, v115
        """)
        self.wave_red("v_add_f32", "v113")
        self.xrot("s91", 6, 3)
        self.cm("v119 = V read address (row lane>>2, 8-byte piece lane&3), v118 = P fragment address,\n"
                "v126 = where this lane's pair of o goes (order of the output projection's contraction)")
        self.a(f"""
        v_rcp_f32 v113, v113
        s_nop 0
        v_readlane_b32 s32, v113, 63
        v_lshrrev_b32 v1, 2, v0
        v_lshlrev_b32 v119, 8, v1
        v_and_b32 v1, 7, v1
        v_lshl_add_u32 v119, v1, 5, v119
        v_and_b32 v1, 3, v0
        v_lshl_add_u32 v119, v1, 3, v119
        v_and_b32 v118, 48, v0
        v_add_u32 v118, {self.SBUF}, v118
        v_lshlrev_b32 v126, 2, v0
        v_xor_b32 v126, s91, v126
        v_bfe_u32 v1, v126, 2, 1
        v_bfe_u32 v2, v126, 3, 2
        v_and_b32 v126, 0xe0, v126
        v_lshl_add_u32 v126, v1, 4, v126
        v_lshl_add_u32 v126, v2, 2, v126
        v_add_u32 v126, {self.OBUF}, v126
        s_mov_b32 s27, 258
        s_waitcnt lgkmcnt(0)
        """)
        for i in range(0, 32, 2):
            self.a(f"v_mov_b64 v[{16+i}:{17+i}], 0")

        def p_prep():
            self.cm("p = bf16(exp(score - max) / sum) of the next chunk, stored over the score")
            self.a("""
            v_lshlrev_b32 v117, 16, v117
            v_subrev_f32 v117, s31, v117
            v_mul_f32 v117, s30, v117
            v_exp_f32 v117, v117
            s_nop 0
            v_mul_f32 v117, s32, v117
            v_cvt_pk_bf16_f32 v117, v117, v117
            ds_write_b16 v120, v117
            v_add_u32 v120, 0x80, v120
            """)

        AD = [112, 113, 114, 115, 116, 124, 125, 127]

        def addrs():
            self.a(f"v_add_u32 v{AD[0]}, s25, v119")
            for t in range(1, 8):
                self.a(f"v_xor_b32 v{AD[t]}, {t*32}, v{AD[0]}")

        def head(hf):
            self.a(f"ds_read_b128 v[{8+4*hf}:{11+4*hf}], v118 offset:{64*hf}")
            if hf == 0:
                self.a("ds_read_u16 v117, v120")

        def reads(hf, t):
            r = 48 + 32 * hf + 4 * t
            self.a(f"ds_read_b64_tr_b16 v[{r}:{r+1}], v{AD[t]} offset:{8192*hf}")
            self.a(f"ds_read_b64_tr_b16 v[{r+2}:{r+3}], v{AD[t]} offset:{8192*hf+4096}")

        def mfma(hf, t):
            r = 48 + 32 * hf + 4 * t
            d = 16 + 4 * t
            self.a(f"v_mfma_f32_16x16x32_bf16 v[{d}:{d+3}], v[{8+4*hf}:{11+4*hf}], v[{r}:{r+3}], v[{d}:{d+3}]")

        p_prep()
        addrs()
        self.a("s_branch L_v_poll0")
        self.cm("---- V phase, half a chunk (32 keys x 128) at a time into v16..v47 (8 tiles of 16 columns);\n"
                "the MFMAs of a half run in the next half: before its wait, or between its reads if there is no wait")
        self.a(".p2align 3\nL_v_loop:")
        for hf in range(2):
            if hf == 0:
                addrs()
            else:
                self.a("s_cmp_eq_u32 s27, 512\ns_cbranch_scc1 L_v_last")
            self.a(f"s_cmp_ge_i32 s26, s27\ns_cbranch_scc1 L_v_fast{hf}")
            for t in range(8):
                self.a(f"s_waitcnt lgkmcnt({14-2*t})")
                mfma(1 - hf, t)
            if hf == 0:
                self.a("ds_write_b32 v122, v123")
            self.a(f"L_v_poll{hf}:")
            self.lds_wait("s26", "s27", "v121", "v1", cached=False)
            head(hf)
            for t in range(8):
                reads(hf, t)
            self.a(f"s_branch L_v_next{hf}\nL_v_fast{hf}:")
            head(hf)
            for t in range(8):
                self.a("s_waitcnt lgkmcnt(14)")
                mfma(1 - hf, t)
                reads(hf, t)
            if hf == 0:
                self.a("ds_write_b32 v122, v123")
            self.a(f"L_v_next{hf}:\ns_add_i32 s27, s27, 2")
        p_prep()
        self.a("v_add_u32 v118, 0x80, v118\nv_add_u32 v123, 1, v123")
        self.next_slot("s25")
        self.a("s_branch L_v_loop\nL_v_last:")
        self.cm("last half: its second quarter is read after barrier 1")
        for t in range(8):
            self.a(f"s_waitcnt lgkmcnt({14-2*t})")
            mfma(0, t)
        head(1)
        self.lds_wait("s26", "511", "v121", "v1")
        for t in range(8):
            self.a(f"ds_read_b64_tr_b16 v[{80+4*t}:{81+4*t}], v{AD[t]} offset:8192")
        self.a("s_barrier")
        for t in range(8):
            self.a(f"ds_read_b64_tr_b16 v[{82+4*t}:{83+4*t}], v{AD[t]} offset:12288")

        def pick(t):
            self.a(f"v_mov_b32_dpp v{16+4*(t%2)}, v{16+4*t} quad_perm:[0,1,2,3] row_mask:{1<<(t//2):#x} bank_mask:0xf")

        self.cm("lane (g, n) <- o[32g + n], o[32g + 16 + n] as one bf16 pair -> LDS, barrier 2")
        for t in range(8):
            self.a(f"s_waitcnt lgkmcnt({7-t})")
            mfma(1, t)
            if t >= 6:
                pick(t - 4)
        pick(4)
        self.a("s_nop 0")
        pick(5)
        self.a("s_nop 0")
        pick(6)
        self.a("s_nop 1")
        pick(7)
        self.a("""
        v_cvt_pk_bf16_f32 v16, v16, v20
        ds_write_b32 v126, v16
        s_waitcnt lgkmcnt(0)
        s_barrier
        s_endpgm
        """)

    def weights(self):
        c = self.c
        NQ = c["NQ"]
        self.title("""weights waves.  s33 = w (0..3), s4 = b, s5 = h, lane = (v9 = g, v10 = c), s90 = 2b
        vector x matrix on row-major weights: a load brings 4 rows x 256 B (lane (g, c): row g, 8 columns) = the B
        operand; A = the 4 vector elements times an 8 x 8 identity, so D[j][c] accumulates column 8c + j.
        The 8 workgroups of a head walk its slices in different orders (index ^ 2b): one fetches, seven hit L2""")
        self.a("""
        L_roles:
        s_cmp_eq_u32 s3, 6
        s_cbranch_scc1 L_aux
        s_sub_u32 s33, s3, 2
        s_lshr_b32 s4, s2, 5
        s_and_b32 s5, s2, 31
        v_lshrrev_b32 v9, 4, v0
        v_and_b32 v10, 15, v0
        s_lshl_b32 s6, s4, 10
        v_lshlrev_b32 v3, 4, v0
        v_add_u32 v3, s6, v3
        s_lshl_b32 s90, s4, 1
        v_xor_b32 v8, s90, v10
        v_lshlrev_b32 v8, 4, v8
        v_lshl_add_u32 v8, v9, 8, v8
        s_lshl_b32 s34, s33, 2
        s_add_u32 s34, s34, s6
        s_lshl_b32 s6, s33, 14
        s_lshl_b32 s35, s5, 8
        s_add_u32 s6, s6, s35
        v_lshlrev_b32 v2, 20, v9
        v_lshl_add_u32 v2, v10, 4, v2
        v_add_u32 v18, s6, v2
        s_lshl_b32 s91, s90, 16
        s_waitcnt lgkmcnt(0)
        """)
        self.srd(8, 36, 8192, "x")
        self.srd(12, 42, 4 << 20, "wq")
        self.cm("x[b] (8 values per lane, for the statistics) and this lane's pair x[128g + 8(c ^ 2b) + 2w + {0,1}]")
        self.a("buffer_load_dwordx4 v[4:7], v3, s[8:11], 0 offen\nbuffer_load_dword v8, v8, s[8:11], s34 offen")
        self.cm("wq piece t = 2n + i -> v32 + 4t: rows 128g + 8(n ^ 2b) + 2w + i, columns 128h + 8c")

        def wq_load(t):
            r = 32 + 4 * t
            self.a(f"s_xor_b32 s59, s91, {(8*(t//2)+t%2)*8192}")
            self.a(f"buffer_load_dwordx4 v[{r}:{r+3}], v18, s[12:15], s59 offen")

        for t in range(NQ):
            wq_load(t)
        self.cm("v12..v15: identity masks, lane m owns bf16 slot m & 7 of an A fragment")
        self.a("""
        v_and_b32 v1, 1, v0
        v_lshlrev_b32 v1, 4, v1
        v_mov_b32 v2, 0xffff
        v_lshlrev_b32 v1, v1, v2
        v_bfe_u32 v2, v0, 1, 2
        """)
        for d in range(4):
            self.a(f"v_cmp_eq_u32 vcc, {d}, v2\ns_nop 1\nv_cndmask_b32 v{12+d}, 0, v1, vcc")
        issued = [NQ]

        def more(k=1):
            for _ in range(k):
                if issued[0] < 32:
                    self.a(f"s_waitcnt vmcnt({NQ-1})")
                    wq_load(issued[0])
                    issued[0] += 1

        more(NQ)
        self.cm("---- layernorm: xn = bf16(bf16(x - bf16(mean)) / bf16(sqrt(bf16(bf16(var) + 1e-5))))")
        for i in range(4):
            self.a(f"v_lshlrev_b32 v{160+2*i}, 16, v{4+i}\nv_and_b32 v{161+2*i}, 0xffff0000, v{4+i}")
        self.a("""
        v_add_f32 v1, v160, v161
        v_add_f32 v2, v162, v163
        v_add_f32 v3, v164, v165
        v_add_f32 v11, v166, v167
        v_add_f32 v1, v1, v2
        v_add_f32 v3, v3, v11
        v_add_f32 v1, v1, v3
        """)
        self.wave_red("v_add_f32", "v1")
        self.a("v_mul_f32 v1, 0x3b000000, v1\ns_nop 0\nv_readlane_b32 s6, v1, 63\ns_nop 1")
        for i in range(8):
            self.a(f"v_subrev_f32 v{160+i}, s6, v{160+i}")
        self.a("v_mul_f32 v1, v160, v160\nv_mul_f32 v2, v161, v161")
        for i in range(2, 8):
            self.a(f"v_fmac_f32 v{1+i%2}, v{160+i}, v{160+i}")
        self.a("v_add_f32 v1, v1, v2")
        self.wave_red("v_add_f32", "v1")
        self.a("v_mul_f32 v1, 0x3b000000, v1\ns_nop 0\nv_readlane_b32 s35, v1, 63\nv_mov_b32 v2, s6")
        self.bf16r("v2", "v2")
        self.a("v_mov_b32 v1, s35")
        self.bf16r("v1", "v1")
        self.a("v_add_f32 v1, 0x3727c5ac, v1")
        self.bf16r("v1", "v1")
        self.a("v_sqrt_f32 v1, v1\ns_nop 0")
        self.bf16r("v1", "v1")
        self.cm("v16 / v17 = this lane's two xn values, each in both halves; v11 = 512w + 32c + 16(g & 1)")
        self.a(f"""
        v_rcp_f32 v1, v1
        v_lshlrev_b32 v16, 16, v8
        v_and_b32 v17, 0xffff0000, v8
        v_sub_f32 v16, v16, v2
        v_sub_f32 v17, v17, v2
        v_cvt_pk_bf16_f32 v17, v16, v17
        v_lshlrev_b32 v16, 16, v17
        v_and_b32 v17, 0xffff0000, v17
        v_mul_f32 v16, v16, v1
        v_mul_f32 v17, v17, v1
        v_cvt_pk_bf16_f32 v16, v16, v16
        v_cvt_pk_bf16_f32 v17, v17, v17
        v_lshlrev_b32 v11, 5, v10
        v_and_b32 v1, 16, v0
        v_add_u32 v11, v11, v1
        s_lshl_b32 s6, s33, 9
        v_add_u32 v11, s6, v11
        v_add_u32 v3, {self.QBUF}, v11
        v_mov_b32 v19, 1
        """)
        self.cm("---- q partial over this wave's 128 rows, as the pieces land")
        for t in range(32):
            a = 20 + 4 * (t % 2)
            self.build_a(a, f"v{16+t%2}", t // 2)
            if t + NQ >= issued[0] and issued[0] < 32:
                more()
            elif issued[0] - t - 1 < NQ:
                self.a(f"s_waitcnt vmcnt({issued[0]-t-1})\ns_nop 0")
            else:
                self.a("s_nop 1")
            r = 32 + 4 * t
            cc = "0" if t == 0 else "v[28:31]"
            self.a(f"v_mfma_f32_16x16x32_bf16 v[28:31], v[{a}:{a+3}], v[{r}:{r+3}], {cc}")
        self.a(f"""
        v_mov_b32 v18, {self.CNT}
        s_nop 6
        ds_write_b128 v3, v[28:31]
        s_mov_b64 exec, 1
        ds_add_u32 v18, v19
        s_mov_b64 exec, -1
        """)
        self.srd(16, 44, 4 << 20, "wo")
        self.srd(20, 48, 512 * 3584, "w1")
        self.srd(24, 50, 1792 * 1024, "w2")
        self.srd(28, 56, WS_BYTES, "ws")
        self.cm("the other weights are read after the loader's L2 prefetch, one or two loads at a time")
        self.a(f"v_mov_b32 v3, {self.LANDED}")
        self.lds_wait("s6", str(4 * c["PF"] + 4), "v3", "v1", cached=False, sleep=16)
        self.cm("---- FFN slice f = s88 = 4(h & 7) + (h >> 3): hidden units 64f .. 64f + 63 (f < 28)")
        self.a("""
        v_mov_b64 v[28:29], 0
        v_mov_b64 v[30:31], 0
        s_and_b32 s88, s5, 7
        s_lshl_b32 s88, s88, 2
        s_lshr_b32 s6, s5, 3
        s_add_u32 s88, s88, s6
        s_cmp_ge_u32 s88, 28
        s_cbranch_scc1 L_ffn_done
        """)
        self.cm("w1 piece n -> v32 + 4n: lane (g, i, c'): row 128g + 8(n ^ 2b) + 2w + i, columns 64f + 8c'")
        self.a("""
        v_bfe_u32 v1, v0, 3, 1
        v_lshl_add_u32 v1, v9, 7, v1
        s_lshl_b32 s6, s33, 1
        v_add_u32 v1, s6, v1
        v_mul_u32_u24 v1, 3584, v1
        v_and_b32 v2, 7, v0
        v_lshl_add_u32 v1, v2, 4, v1
        s_lshl_b32 s6, s88, 7
        v_add_u32 v1, s6, v1
        """)
        for n in range(16):
            r = 32 + 4 * n
            self.a(f"s_xor_b32 s6, s90, {n}\ns_mulk_i32 s6, 28672\ns_waitcnt vmcnt(0)")
            self.a(f"buffer_load_dwordx4 v[{r}:{r+3}], v1, s[20:23], s6 offen")
        self.cm("w2 piece n -> v96 + 4n: lane (g, c): row 64f + 16g + (n ^ 2b), columns 128w + 8c")
        self.a("""
        v_lshlrev_b32 v1, 14, v9
        v_lshl_add_u32 v1, v10, 4, v1
        s_lshl_b32 s6, s88, 16
        s_lshl_b32 s35, s33, 8
        s_add_u32 s6, s6, s35
        v_add_u32 v1, s6, v1
        s_lshl_b32 s91, s90, 10
        """)
        for n in range(16):
            r = 96 + 4 * n
            if n % 2 == 0:
                self.a(f"s_xor_b32 s6, s91, {n*1024}")
            self.a(f"s_waitcnt vmcnt(0)\nbuffer_load_dwordx4 v[{r}:{r+3}], v1, s[24:27], s6 offen offset:{(n%2)*1024}")
        self.cm("xn w1: A rows 0-7 carry i = 0, rows 8-15 i = 1; only the blocks with matching i are kept")
        for n in range(16):
            a = 20 + 4 * (n % 2)
            self.a(f"v_mov_b32_dpp v1, v16 row_newbcast:{n} row_mask:0xf bank_mask:0x3")
            self.a(f"v_mov_b32_dpp v1, v17 row_newbcast:{n} row_mask:0xf bank_mask:0xc")
            for d in range(4):
                self.a(f"v_and_b32 v{a+d}, v1, v{12+d}")
            r = 32 + 4 * n
            self.a(f"s_nop 1\nv_mfma_f32_16x16x32_bf16 v[28:31], v[{a}:{a+3}], v[{r}:{r+3}], v[28:31]")
        self.a(f"""
        v_and_b32 v1, 7, v0
        v_lshlrev_b32 v1, 5, v1
        v_and_b32 v2, 16, v0
        v_add_u32 v1, v1, v2
        v_and_b32 v2, 8, v0
        v_lshl_add_u32 v1, v2, 5, v1
        s_lshl_b32 s6, s33, 9
        s_add_u32 s6, s6, {self.FBUF}
        v_add_u32 v1, s6, v1
        s_mov_b32 exec_lo, 0x00ff00ff
        s_mov_b32 exec_hi, 0xff00ff00
        ds_write_b128 v1, v[28:31]
        s_mov_b64 exec, 1
        ds_add_u32 v18, v19 offset:4
        s_mov_b64 exec, -1
        v_add_u32 v2, 4, v18
        """)
        self.lds_wait("s6", "4", "v2", "v1", cached=False, sleep=1)
        self.cm("lane l: hidden unit l ^ 2b = bf16(silu(bf16(sum of the 8 partials)))")
        self.a(f"v_xor_b32 v1, s90, v0\nv_lshlrev_b32 v1, 2, v1\nv_add_u32 v1, {self.FBUF}, v1")
        for k in range(4):
            self.a(f"ds_read2st64_b32 v[{20+2*k}:{21+2*k}], v1 offset0:{2*k} offset1:{2*k+1}")
        self.a("""
        s_waitcnt lgkmcnt(0)
        v_add_f32 v20, v20, v21
        v_add_f32 v22, v22, v23
        v_add_f32 v24, v24, v25
        v_add_f32 v26, v26, v27
        v_add_f32 v20, v20, v22
        v_add_f32 v24, v24, v26
        v_add_f32 v20, v20, v24
        """)
        self.bf16r("v1", "v20")
        self.a(f"""
        v_mul_f32 v2, {LOG2E | 0x80000000:#x}, v1
        v_exp_f32 v2, v2
        s_nop 0
        v_add_f32 v2, 1.0, v2
        v_rcp_f32 v2, v2
        s_nop 0
        v_mul_f32 v1, v1, v2
        v_cvt_pk_bf16_f32 v16, v1, v1
        s_waitcnt vmcnt(0)
        s_nop 0
        """)
        for n in range(16):
            a = 20 + 4 * (n % 2)
            self.build_a(a, "v16", n)
            r = 96 + 4 * n
            cc = "0" if n == 0 else "v[28:31]"
            self.a(f"s_nop 1\nv_mfma_f32_16x16x32_bf16 v[28:31], v[{a}:{a+3}], v[{r}:{r+3}], {cc}")
        self.a("s_nop 7\nL_ffn_done:")
        self.cm("the FFN partial seeds the accumulators v160 + 4e (column 128w + 8c + e) of the output projection")
        for i in range(0, 32, 2):
            self.a(f"v_mov_b64 v[{160+i}:{161+i}], 0")
        for e in range(8):
            self.a(f"v_mov_b32 v{160+4*e}, v{28+e%4}")
        self.cm("---- wo, transposed in registers into MFMA B fragments: v[32 + 64(s>>1) + 8e + 4(s&1) + jj],\n"
                "lane (g, c) = wo[128h + ((32s + 4g + jj + {0,16}) ^ X(b))][128w + 8c + e]")
        self.a("""
        s_lshl_b32 s6, s2, 11
        v_add_u32 v11, s6, v11
        v_lshlrev_b32 v1, 12, v9
        v_lshl_add_u32 v1, v10, 4, v1
        s_lshl_b32 s6, s5, 17
        s_lshl_b32 s35, s33, 8
        s_add_u32 s6, s6, s35
        v_add_u32 v1, s6, v1
        s_mov_b32 s86, 0x05040100
        s_mov_b32 s87, 0x07060302
        """)
        self.xrot("s91", 15, 11)

        def freg(s, e):
            return 32 + 64 * (s // 2) + 8 * e + 4 * (s % 2)

        for s in range(4):
            for jj in range(4):
                if jj % 2 == 0:
                    self.a(f"s_xor_b32 s6, s91, {(32*s+jj)*1024}\ns_add_u32 s35, s6, 16384")
                for r in range(2):
                    self.a(f"buffer_load_dwordx4 v[{20+4*r}:{23+4*r}], v1, s[16:19], {('s6','s35')[r]} offen offset:{(jj%2)*1024}")
                self.a("s_waitcnt vmcnt(0)")
                for d in range(4):
                    for r in range(2):
                        self.a(f"v_perm_b32 v{freg(s, 2*d+r)+jj}, v{24+d}, v{20+d}, s{86+r}")
        self.cm("---- o wo on the 2:4 MFMA (64 k per instruction): even A rows hold elements 0,1 of every four, odd\n"
                "rows elements 2,3 (v3 = positions), so an even plus an odd row of D is the full dense product")
        self.a(f"""
        v_and_b32 v1, 48, v0
        v_and_b32 v2, 1, v0
        v_cmp_eq_u32 vcc, 1, v2
        v_lshlrev_b32 v2, 4, v2
        v_lshl_add_u32 v1, v1, 1, v2
        v_add_u32 v1, {self.OBUF}, v1
        v_mov_b32 v2, 0x44444444
        v_mov_b32 v3, 0xeeeeeeee
        v_cndmask_b32 v3, v2, v3, vcc
        .p2align 3
        s_barrier
        s_barrier
        ds_read_b128 v[12:15], v1
        ds_read_b128 v[16:19], v1 offset:128
        """)

        def fin(e):
            d = 160 + 4 * e
            self.a(f"v_add_f32_dpp v{28+e%4}, v{d}, v{d+1} quad_perm:[0,1,2,3] row_mask:{1+e//4:#x} bank_mask:0xf")

        order = (0, 4, 1, 5, 2, 6, 3, 7)
        for k, e in enumerate(order):
            d = 160 + 4 * e
            for S in range(2):
                if k == 0:
                    self.a(f"s_waitcnt lgkmcnt({1-S})")
                r = freg(2 * S, e)
                self.a(f"v_smfmac_f32_16x16x64_bf16 v[{d}:{d+3}], v[{12+4*S}:{15+4*S}], v[{r}:{r+7}], v3")
            if k >= 4:
                fin(order[k - 4])
        self.cm("0xffffffff (a NaN) becomes 0xfffffffe; 8 wait states between an MFMA and the read of its result")
        self.a("v_min_u32 v28, -2, v28\nv_min_u32 v29, -2, v29")
        fin(2)
        fin(6)
        self.a("v_min_u32 v30, -2, v30")
        fin(3)
        self.a("s_mov_b32 exec_hi, 0")
        fin(7)
        self.a(f"""
        v_min_u32 v31, -2, v31
        buffer_store_dwordx4 v[28:31], v11, s[28:31], 0 offen {c['gst'] or COH}
        {"s_waitcnt vmcnt(0)" if c["ack"] else ""}
        s_barrier
        s_endpgm
        """)

    def aux(self):
        c = self.c
        self.title("aux wave.  s4 = b")
        self.cm("mark this workgroup's record empty (workgroups 0..127 also zero one line of the control area),\n"
                "wait for the stores, count the workgroup as arrived")
        self.a("""
        L_aux:
        s_lshr_b32 s4, s2, 5
        s_lshl_b32 s6, s2, 11
        v_lshlrev_b32 v1, 4, v0
        v_mov_b64 v[20:21], -1
        v_mov_b64 v[22:23], -1
        s_lshl_b32 s33, s4, 5
        v_mov_b32 v18, s33
        v_mov_b32 v19, 1
        s_waitcnt lgkmcnt(0)
        """)
        self.srd(28, 56, WS_BYTES, "ws")
        self.srd(60, 54, 256, "debug")
        self.a(f"""
        buffer_store_dwordx4 v[20:23], v1, s[28:31], s6 offen {COH}
        buffer_store_dwordx4 v[20:23], v1, s[28:31], s6 offen offset:1024 {COH}
        s_cmp_ge_u32 s2, 128
        s_cbranch_scc1 L_no_pclear
        s_lshl_b32 s6, s2, 7
        s_add_u32 s6, s6, {WS_P:#x}
        v_mov_b64 v[24:25], 0
        v_mov_b64 v[26:27], 0
        s_mov_b64 exec, 0xff
        buffer_store_dwordx4 v[24:27], v1, s[28:31], s6 offen {COH}
        L_no_pclear:
        s_mov_b64 exec, 1
        s_waitcnt vmcnt(0)
        buffer_atomic_add v19, v18, s[60:63], 0 offen
        s_mov_b64 exec, -1
        """)
        self.cm("this workgroup finishes columns 16 s5 .. 16 s5 + 15, s5 = 4(h & 7) + (h >> 3)\n"
                "v8: lane (p = l >> 2, e = l & 3): columns 4e.. of that block in the record of producer p (and p + 16)\n"
                "v10: byte offset of x / out [b][16 s5 + 4e + (0,2,1,3)[l >> 4]]")
        self.a(f"""
        s_bfe_u32 s6, s2, 0x20003
        s_and_b32 s5, s2, 7
        s_lshl_b32 s5, s5, 2
        s_or_b32 s5, s5, s6
        v_lshrrev_b32 v1, 2, v0
        v_lshlrev_b32 v1, 11, v1
        v_and_b32 v2, 3, v0
        v_lshl_add_u32 v1, v2, 4, v1
        s_lshl_b32 s6, s4, 16
        s_lshl_b32 s35, s5, 6
        s_add_u32 s6, s6, s35
        v_add_u32 v8, s6, v1
        v_lshlrev_b32 v2, 3, v2
        v_bfe_u32 v1, v0, 4, 1
        v_lshl_add_u32 v2, v1, 2, v2
        v_bfe_u32 v1, v0, 5, 1
        v_lshl_add_u32 v2, v1, 1, v2
        s_lshl_b32 s6, s4, 10
        s_lshl_b32 s35, s5, 5
        s_add_u32 s6, s6, s35
        v_add_u32 v10, s6, v2
        v_mov_b32 v16, {self.LANDED}
        s_lshr_b32 s33, s2, 3
        s_mul_i32 s27, s33, {c['PERIOD']}
        s_lshr_b32 s27, s27, 5
        s_add_u32 s27, s27, {c['CSTART'] - c['PERIOD']}
        v_and_b32 v15, 7, v0
        v_lshlrev_b32 v15, 5, v15
        """)
        self.srd(8, 36, 8192, "x")
        self.srd(12, 52, 8192, "out")
        self.lds_wait("s26", "s27", "v16", "v1", cached=False, sleep=8)
        self.cm("all 256 workgroups arrived?  if not (s58 = 0): no depth control, and wait for this batch later")
        self.a(f"""
        buffer_load_ushort v11, v10, s[8:11], 0 offen
        buffer_load_dword v1, v15, s[60:63], 0 offen {COH}
        s_mov_b32 s58, 0
        s_waitcnt vmcnt(0)
        v_cmp_gt_u32 vcc, 32, v1
        v_lshlrev_b32 v11, 16, v11
        s_cbranch_vccnz L_ctrl_done
        s_mov_b32 s58, 1
        """)
        base = c["FB"] + 0.5 + (0 if c["KEND"] else c["K"] * c["PERIOD"] / 2)
        nx = (c["XEND"] - c["XSTART"]) // c["XP"]
        assert nx < 32 and c["PERIOD"] & (c["PERIOD"] - 1) == 0
        dg = int((c["G"] - c["GEND"]) * 256 / 7 * 256 / max(nx, 1))
        self.cm("---- depth control.  group = (die, workgroup & 7), slot = workgroup >> 3; s34 = the group's line.\n"
                "Plain loads / stores: the line stays in the die's L2.  word = quarters landed | group offset << 16")
        self.a(f"""
        s_getreg_b32 s6, hwreg(HW_REG_XCC_ID)
        s_and_b32 s34, s6, 7
        s_lshl_b32 s34, s34, 3
        s_and_b32 s35, s2, 7
        s_or_b32 s34, s34, s35
        s_lshl_b32 s34, s34, 7
        s_add_u32 s34, s34, {WS_P:#x}
        s_mov_b32 s46, {f2u(base + c['PAR'] / 2):#x}
        s_and_b32 s6, s6, 1
        s_cselect_b32 s46, {f2u(base - c['PAR'] / 2):#x}, s46
        v_and_b32 v14, 31, v0
        v_lshlrev_b32 v14, 2, v14
        s_lshl_b32 s33, s33, 2
        v_mov_b32 v13, s33
        v_lshlrev_b32 v17, 2, v0
        v_add_u32 v17, {self.LEVEL}, v17
        v_mov_b32 v12, {WS_X:#x}
        s_mov_b32 s47, 0
        s_mov_b32 s48, 0
        s_mov_b32 s43, 0
        s_mov_b32 s49, {c['XSTART']}
        s_mov_b32 s44, {int(c['G'] * 256 / 7 * 256)}
        s_cmp_eq_u32 s33, 0
        s_cselect_b32 s49, s49, 0x7fff
        L_ctrl:
        s_add_u32 s27, s27, {c['PERIOD']}
        """)
        self.lds_wait("s26", "s27", "v16", "v1", cached=False, sleep=2)
        self.cm("never fall behind the stream: skip missed sampling points, stop near the end")
        self.a(f"""
        s_cmp_ge_i32 s26, {c['CEND']}
        s_cbranch_scc1 L_ctrl_done
        s_sub_u32 s6, s26, s27
        s_and_b32 s6, s6, {-c['PERIOD']}
        s_add_u32 s27, s27, s6
        buffer_load_dword v2, v14, s[28:31], s34 offen
        s_mov_b64 exec, 1
        s_cmp_lt_i32 s27, s49
        s_cbranch_scc1 L_ctrl_post
        """)
        self.cm("slot 0 at a checkpoint: rank among the eight groups -> offset in 1/256 levels")
        self.a(f"""
        v_mov_b32 v3, 2
        buffer_atomic_add v3, v12, s[28:31], 0 offen sc0
        v_add_u32 v12, 0x100, v12
        s_add_u32 s49, s49, {c['XP']}
        s_cmp_gt_i32 s49, {c['XEND']}
        s_cselect_b32 s49, 0x7fff, s49
        s_waitcnt vmcnt(0)
        v_readfirstlane_b32 s6, v3
        s_sub_i32 s6, s6, 7
        s_mul_i32 s35, s6, {int(c['GI'] * 256 / 7 * 256)}
        s_mul_i32 s6, s6, s44
        s_add_i32 s43, s43, s35
        s_add_i32 s6, s6, s43
        s_ashr_i32 s6, s6, 8
        s_lshl_b32 s48, s6, 16
        s_sub_i32 s44, s44, {dg}
        L_ctrl_post:
        v_or_b32 v3, s48, v1
        buffer_store_dword v3, v13, s[28:31], s34 offen
        s_mov_b64 exec, -1
        v_cvt_f32_u32 v6, v1
        s_waitcnt vmcnt(1)
        v_readfirstlane_b32 s45, v2
        v_and_b32 v2, 0xffff, v2
        v_cmp_ne_u32 vcc, 0, v2
        s_bcnt1_i32_b64 s6, vcc
        s_ashr_i32 s45, s45, 16
        """)
        self.wave_red("v_add_u32", "v2")
        self.cm("level = base + K * (mean of the posted values - own) + offset")
        self.a(f"""
        v_cvt_f32_u32 v4, s6
        v_readlane_b32 s35, v2, 63
        v_rcp_f32 v4, v4
        v_mov_b32 v7, s46
        s_cmp_lt_i32 s27, {c['FBXEND']}
        s_cselect_b32 s6, {int(c['FBX']*256)}, 0
        s_add_i32 s45, s45, s6
        v_cvt_f32_u32 v5, s35
        v_fma_f32 v6, v5, v4, -v6
        v_cvt_f32_i32 v5, s45
        {f"v_add_f32 v6, {f2u(c['PERIOD']/2):#x}, v6" if c["KEND"] else ""}
        {f"s_mov_b32 s6, {f2u(c['KEND']):#x}" if c["KEND"] else ""}
        {f"s_cmp_lt_i32 s27, {c['KSW']}" if c["KEND"] else ""}
        {f"s_cselect_b32 s6, {f2u(c['K']):#x}, s6" if c["KEND"] else ""}
        v_fmac_f32 v7, {"s6" if c["KEND"] else hex(f2u(c['K']))}, v6
        v_fmac_f32 v7, 0x3b800000, v5
        v_max_f32 v7, 0, v7
        v_cvt_u32_f32 v7, v7
        v_min_u32 v7, {len(c['LEVELS']) - 1}, v7
        s_cmp_eq_u32 s47, 0
        {"s_cselect_b32 s66, s35, s66" if c["lite"] else ""}
        s_mov_b32 s47, 1
        s_cbranch_scc1 L_ctrl
        ds_write_b32 v17, v7
        s_cmp_lt_i32 s27, {c['CEND'] - c['PERIOD']}
        s_cbranch_scc1 L_ctrl
        L_ctrl_done:
        s_mov_b32 s44, 0x8000
        s_cmp_eq_u32 s58, 0
        """)
        for i in range(0, 8 * c["NS"] if c["NS"] > 1 else 0, 2):
            self.a(f"v_mov_b64 v[{32+i}:{33+i}], -1")
        self.cm("barriers 1..3: stream landed, o in LDS, own record stored")
        T = c["lite"] == 2
        self.a(f"""
        .p2align 3
        s_barrier
        {"s_memrealtime s[72:73]" if T else ""}
        s_barrier
        {"s_memrealtime s[74:75]" if T else ""}
        s_barrier
        {"s_memrealtime s[76:77]" if T else ""}
        {"s_mov_b32 s66, s7" if T else ""}
        s_cbranch_scc1 L_wait_batch
        """)
        self.cm("---- gather: lanes whose eight words have all been written drop out")
        NS = c["NS"]

        def issue(k):
            r = 32 + 8 * k
            self.a(f"""
            buffer_load_dwordx4 v[{r}:{r+3}], v8, s[28:31], 0 offen {c['gld'] or COH}
            buffer_load_dwordx4 v[{r+4}:{r+7}], v8, s[28:31], s44 offen {c['gld'] or COH}
            """)

        self.a("L_gather:")
        for k in range(NS - 1):
            issue(k)
            if c["GAP"]:
                self.a(f"s_sleep {c['GAP']}")
        self.a("L_gather_loop:")
        for k in range(NS):
            issue((k + NS - 1) % NS)
            if k == 0:
                self.budget()
            if c["GAP"] and NS > 1:
                self.a(f"s_sleep {c['GAP']}")
            r = 32 + 8 * k
            self.a(f"""
            s_waitcnt vmcnt({2*(NS-1)})
            v_max3_u32 v1, v{r}, v{r+1}, v{r+2}
            v_max3_u32 v2, v{r+3}, v{r+4}, v{r+5}
            v_max3_u32 v1, v1, v{r+6}, v{r+7}
            v_add_f32 v28, v{r}, v{r+4}
            v_max_u32 v1, v1, v2
            v_add_f32 v29, v{r+1}, v{r+5}
            v_cmp_eq_u32 vcc, -1, v1
            v_add_f32 v30, v{r+2}, v{r+6}
            v_add_f32 v31, v{r+3}, v{r+7}
            s_and_b64 exec, exec, vcc
            {"s_cbranch_execnz L_gather_loop" if k == NS - 1 else "s_cbranch_execz L_gather_done"}
            """)
        self.a("L_gather_done:\ns_mov_b64 exec, -1")
        if T:
            self.a("s_memrealtime s[78:79]\ns_sub_u32 s66, s66, s7")
        self.cm("sum over the producers (fixed order), add x, round, store")
        self.a(f"""
        v_permlane32_swap_b32 v28, v29
        v_permlane32_swap_b32 v30, v31
        v_add_f32 v28, v28, v29
        v_add_f32 v30, v30, v31
        s_nop 1
        v_permlane16_swap_b32 v28, v30
        v_add_f32 v28, v28, v30
        s_nop 1
        v_add_f32_dpp v28, v28, v28 row_ror:8 {DPPALL}
        v_add_f32 v29, v11, v28
        s_nop 0
        v_add_f32_dpp v29, v28, v29 row_ror:4 {DPPALL}
        v_cvt_pk_bf16_f32 v29, v29, v29
        s_mov_b32 exec_lo, 0x000f000f
        s_mov_b32 exec_hi, 0x000f000f
        buffer_store_short v29, v10, s[12:15], 0 offen
        """)
        if c["lite"]:
            self.a("""
            s_waitcnt vmcnt(0)
            s_memrealtime s[70:71]
            s_lshl_b32 s96, s2, 10
            s_add_u32 s96, s96, 0x1000300
            s_mov_b64 exec, -1
            v_mov_b32 v1, s96
            s_sleep 127
            s_sleep 127
            s_sleep 127
            s_waitcnt lgkmcnt(0)
            v_mov_b32 v2, s64
            v_mov_b32 v3, s65
            v_mov_b32 v4, s70
            v_mov_b32 v5, s71
            global_store_dwordx2 v1, v[2:3], s[56:57]
            global_store_dwordx2 v1, v[4:5], s[56:57] offset:24
            v_mov_b32 v6, s66
            v_mov_b32 v7, 0
            global_store_dwordx2 v1, v[6:7], s[56:57] offset:32
            """)
            for k in range(4):
                self.a(f"v_mov_b32 v{8+2*k}, s{72+2*k}\nv_mov_b32 v{9+2*k}, s{73+2*k}\nglobal_store_dwordx2 v1, v[{8+2*k}:{9+2*k}], s[56:57] offset:{40+8*k}")
        self.a("L_end:\ns_endpgm")
        self.cm("rare: some workgroup had not arrived yet; wait until the 32 records of this batch are marked")
        self.a("L_wait_batch:")
        self.budget()
        self.a(f"""
        buffer_load_dword v1, v18, s[60:63], 0 offen {COH}
        s_waitcnt vmcnt(0)
        v_cmp_gt_u32 vcc, 32, v1
        s_cbranch_vccz L_gather
        s_sleep 32
        s_branch L_wait_batch
        """)

    def body(self):
        n = self.c["name"]
        self.L.append("; keeps the start-up code clear of a 4 KiB boundary\n.p2align 12")
        self.L.append(f".globl {n}\n.p2align 8\n.type {n},@function\n{n}:")
        self.entry()
        self.loader()
        self.weights()
        if self.c["lay"] == 0:
            self.consumer()
            self.aux()
            self.L += self.loader_top + self.loader_bodies
        else:
            self.aux()
            self.L += self.loader_top
            self.L.append("; the consumer's code fits one 4 KiB page: instruction prefetch does not cross pages\n.p2align 12")
            self.consumer()
            self.L += self.loader_bodies
        return "\n".join(self.L)

    def kd(self):
        n = self.c["name"]
        return f""".p2align 6
.amdhsa_kernel {n}
  .amdhsa_next_free_vgpr 256
  .amdhsa_next_free_sgpr 100
  .amdhsa_accum_offset 256
  .amdhsa_group_segment_fixed_size 0
  .amdhsa_kernarg_size 88
  .amdhsa_user_sgpr_count 2
  .amdhsa_user_sgpr_kernarg_segment_ptr 1
  .amdhsa_system_sgpr_workgroup_id_x 1
  .amdhsa_float_denorm_mode_32 3
.end_amdhsa_kernel"""


HEADER = open("cdna_kernels/" + NAME + ".s.ref").read().split("; Override launch geometry")[0]


def single(path, **kw):
    g = Gen(**kw)
    s = HEADER
    s += f"; @launch grid=(256,1,1) block=({64*NWAVES},1,1) lds={g.LDS_BYTES}\n"
    s += DOC
    s += '.amdgcn_target "amdgcn-amd-amdhsa--gfx950"\n.text\n' + g.body() + '\n.section .rodata,"a"\n' + g.kd() + "\n"
    open(path, "w").write(s)


if __name__ == "__main__":
    out = sys.argv[1] if len(sys.argv) > 1 else "cdna_kernels/" + NAME + ".s"
    kw = {}
    for x in sys.argv[2:]:
        k, v = x.split("=", 1)
        try:
            v = eval(v)
        except Exception:
            pass
        kw[k] = v
    single(out, **kw)
```
